```python
import torch

def _softmax(x, axis=-1):
    return torch.softmax(x, dim=axis)
def _gelu(x):
    return torch.nn.functional.gelu(x, approximate="tanh")
def _silu(x):
    return torch.nn.functional.silu(x)
def _sigmoid(x):
    return torch.sigmoid(x)
def _layernorm(x, axis=-1, eps=1e-5):
    m = x.mean(dim=axis, keepdim=True)
    v = x.var(dim=axis, keepdim=True, unbiased=False)
    return (x - m) / torch.sqrt(v + eps)
def _scatter_add(tgt, idx, src, axis=0):
    return tgt.clone().index_add_(axis, idx, src)
def _segment_sum(src, seg, n):
    out = torch.zeros((n,) + src.shape[1:], dtype=src.dtype)
    return out.index_add_(0, seg, src)
def _pad(x, pw):
    flat = tuple(v for pair in reversed(pw) for v in pair)
    return torch.nn.functional.pad(x, flat)

kernel_name = 'standalone__mha_softmax__near_ridge'

def setup_inputs():

    _w = (lambda a: (lambda t: t.to(torch.bfloat16) if t.is_floating_point() else t)(torch.as_tensor(a)))
    B, H, Sq, Sk, D = 16, 32, 256, 256, 192
    return {
        "q": _w((lambda *s: torch.randn(*s, dtype=torch.bfloat16) * 0.8)(B, H, Sq, D)),
        "k": _w((lambda *s: torch.randn(*s, dtype=torch.bfloat16) * 0.8)(B, H, Sk, D)),
        "v": _w((lambda *s: torch.randn(*s, dtype=torch.bfloat16) * 0.05)(B, H, Sk, D)),
    }

def reference(q, k, v):
    scale = q.shape[-1] ** -0.5
    scores = torch.einsum("bhqd,bhkd->bhqk", q, k) * scale
    p = _softmax(scores, axis=-1)
    return torch.einsum("bhqk,bhkd->bhqd", p, v)
```

```python
import sys, argparse

NAME = "standalone__mha_softmax__near_ridge"
ROWB = 384
HEADB = 256 * ROWB
TILE = 64 * ROWB
NHEADS = 512
NWG = 256

HEADER = """; Kernarg layout for this problem (48 bytes, ptrs only, base s[0:1]):
"""


class G:
    def __init__(self, o):
        self.o = o
        self.L = []

    def e(self, s):
        self.L.append("    " + s)

    def c(self, s):
        self.L.append("    ; " + s)

    def lab(self, s):
        self.L.append(s + ":")


def vr(a, n=1):
    return f"v{a}" if n == 1 else f"v[{a}:{a+n-1}]"


def sr(a, n=1):
    return f"s{a}" if n == 1 else f"s[{a}:{a+n-1}]"


S0 = 0
O0 = 64
KF = 128
VF = 160
Q0 = 192
VDMA = 240
VQOFF = 243
VOOFF = 244
VOW = 245
VOR = 246
VKS = 247
VVS = 248
VCUR = 249
VTMP = 253
VINV = 254

SQ, SK, SV, SO = 12, 16, 20, 24
S_HEAD = 28
S_CONS = 29
S_FILL = 30
S_WDMA = 31
S_C = 32
S_T0 = 34
S_W = 35
S_OS = 36
S_TL = 40
S_NEGC = 44
S_T1 = 45
S_T2 = 46
S_PC = 48


def build(o):
    g = G(o)
    e, c = g.e, g.c
    NS = o.ns
    PD = NS - 1
    assert NS == 5
    STG = NS * TILE
    LDS = STG + 8 * 4096
    ldflag = (" " + o.ldflag) if o.ldflag else ""
    qflag = (" " + o.qflag) if o.qflag else ""
    stflag = (" " + o.stflag) if o.stflag else ""

    out = [HEADER + f"; @launch grid=({NWG},1,1) block=(512,1,1) lds={LDS}"]
    out.append('.amdgcn_target "amdgcn-amd-amdhsa--gfx950"')
    out.append(".text")
    out.append(f".globl {NAME}_kernel")
    out.append(".p2align 8")
    out.append(f".type {NAME}_kernel,@function")
    out.append(f"{NAME}_kernel:")

    e(f"s_cmp_ge_u32 s2, {NWG}")
    e("s_cbranch_scc1 L_end")
    e("s_load_dwordx8 s[4:11], s[0:1], 0")
    c("lane constants")
    e("v_lshrrev_b32 v1, 6, v0")
    e("v_and_b32 v2, 63, v0")
    e(f"v_readfirstlane_b32 s{S_W}, v1")
    e(f"s_mov_b32 s{S_HEAD}, s2")
    e(f"s_mov_b32 s{S_CONS}, 0")
    e(f"s_mov_b32 s{S_FILL}, {PD*TILE}")
    e(f"s_mul_i32 s{S_WDMA}, s{S_W}, 3072")
    import struct, math
    cval = (192 ** -0.5) * math.log2(math.e)
    cbits = struct.unpack("<I", struct.pack("<f", cval))[0]
    nbits = struct.unpack("<I", struct.pack("<f", -cval))[0]
    e(f"s_mov_b32 s{S_C}, {cbits:#x}")
    e(f"s_mov_b32 s{S_C+1}, {cbits:#x}")
    e(f"s_mov_b32 s{S_NEGC}, {nbits:#x}")
    for j in range(4):
        e(f"s_mov_b32 s{S_OS+j}, {3072*j}")
        e(f"s_mov_b32 s{S_TL+j}, {TILE*j}")
    e(f"s_and_b32 s{S_T0}, s{S_W}, 1")
    e(f"s_lshl_b32 s{S_T0}, s{S_T0}, 1")
    e(f"s_movk_i32 s{S_T1}, 2731")
    for k in range(3):
        e(f"v_add_u32 v3, {64*k}, v2")
        e(f"v_mul_lo_u32 v3, v3, s{S_T1}")
        e("v_lshrrev_b32 v3, 16, v3")
        e("v_and_b32 v4, 2, v3")
        e("v_lshlrev_b32 v4, 1, v4")
        e("v_lshrrev_b32 v5, 2, v3")
        e("v_or_b32 v4, v4, v5")
        e(f"v_or_b32 v4, s{S_T0}, v4")
        e("v_xor_b32 v4, v4, v2")
        e("v_lshlrev_b32 v4, 4, v4")
        e(f"v_add_u32 v{VDMA+k}, s{S_WDMA}, v4")
    e("v_and_b32 v3, 31, v2")
    e("v_lshrrev_b32 v4, 5, v2")
    e(f"s_mul_i32 s{S_T1}, s{S_W}, {32*ROWB}")
    e(f"s_movk_i32 s{S_T2}, {ROWB}")
    e(f"v_mul_lo_u32 v5, v3, s{S_T2}")
    e("v_lshlrev_b32 v6, 4, v4")
    e("v_add_u32 v6, v5, v6")
    e(f"v_add_u32 v{VQOFF}, s{S_T1}, v6")
    e("v_and_b32 v6, 2, v3")
    e("v_lshlrev_b32 v6, 1, v6")
    e("v_bfe_u32 v7, v3, 2, 2")
    e("v_or_b32 v6, v6, v7")
    e("v_xor_b32 v6, v6, v4")
    e("v_lshlrev_b32 v6, 4, v6")
    e(f"v_add_u32 v{VKS}, v5, v6")
    e(f"s_lshl_b32 s{S_T0}, s{S_W}, 12")
    e(f"s_add_u32 s{S_T0}, s{S_T0}, {STG}")
    e("v_lshlrev_b32 v5, 7, v3")
    e("v_and_b32 v6, 7, v3")
    e("v_lshlrev_b32 v6, 4, v6")
    e("v_add_u32 v5, v5, v6")
    e("v_lshlrev_b32 v6, 3, v4")
    e("v_add_u32 v5, v5, v6")
    e(f"v_add_u32 v{VOW}, s{S_T0}, v5")
    e("v_lshrrev_b32 v5, 3, v2")
    e("v_and_b32 v6, 7, v2")
    e("v_xor_b32 v7, v5, v6")
    e("v_lshlrev_b32 v7, 4, v7")
    e("v_lshlrev_b32 v8, 7, v5")
    e("v_add_u32 v7, v7, v8")
    e(f"v_add_u32 v{VOR}, s{S_T0}, v7")
    e(f"v_mul_lo_u32 v7, v5, s{S_T2}")
    e("v_lshlrev_b32 v6, 4, v6")
    e("v_add_u32 v7, v7, v6")
    e(f"v_add_u32 v{VOOFF}, s{S_T1}, v7")
    e("v_bfe_u32 v5, v2, 2, 2")
    e("v_lshlrev_b32 v6, 2, v4")
    e("v_add_u32 v6, v6, v5")
    e(f"v_mul_lo_u32 v6, v6, s{S_T2}")
    e("v_lshrrev_b32 v7, 1, v5")
    e("v_lshlrev_b32 v7, 2, v7")
    e("v_or_b32 v7, v7, v4")
    e("v_bfe_u32 v8, v2, 4, 1")
    e("v_lshlrev_b32 v8, 1, v8")
    e("v_bfe_u32 v9, v2, 1, 1")
    e("v_or_b32 v8, v8, v9")
    e("v_xor_b32 v7, v7, v8")
    e("v_lshlrev_b32 v7, 4, v7")
    e("v_add_u32 v6, v6, v7")
    e("v_and_b32 v8, 1, v2")
    e("v_lshlrev_b32 v8, 3, v8")
    e(f"v_add_u32 v{VVS}, v6, v8")

    if o.codepf:
        c("warm the L2 with this kernel's own code")
        e(f"s_getpc_b64 s[{S_PC}:{S_PC+1}]")
        g.lab("L_pc")
        e(f"s_and_b32 s{S_PC}, s{S_PC}, 0xffffff00")
        e("v_lshlrev_b32 v5, 4, v0")
        for j in range(o.codepf):
            if j:
                e(f"v_add_u32 v5, 8192, v5")
            e(f"global_load_dwordx4 v[{KF+4*j}:{KF+4*j+3}], v5, s[{S_PC}:{S_PC+1}]")

    e("s_waitcnt lgkmcnt(0)")

    def srd(dst, ptr, headreg, validreg=None):
        if validreg is None:
            e(f"s_mul_i32 s{S_T0}, s{headreg}, {HEADB}")
            e(f"s_mov_b32 s{dst+2}, {HEADB}")
        else:
            e(f"s_cmp_lt_u32 s{headreg}, {NHEADS}")
            e(f"s_cselect_b32 s{S_T0}, s{headreg}, 0")
            e(f"s_cselect_b32 s{dst+2}, {HEADB}, 0")
            e(f"s_mul_i32 s{S_T0}, s{S_T0}, {HEADB}")
        e(f"s_add_u32 s{dst}, s{ptr}, s{S_T0}")
        e(f"s_addc_u32 s{dst+1}, s{ptr+1}, 0")
        e(f"s_and_b32 s{dst+1}, s{dst+1}, 0xffff")
        e(f"s_mov_b32 s{dst+3}, 0x20000")

    def dma(srdreg, tl, slot_expr_reg=None, slot_const=None):
        if slot_const is not None:
            e(f"s_add_u32 m0, s{S_WDMA}, {slot_const}")
        else:
            e(f"s_add_u32 m0, s{S_WDMA}, s{slot_expr_reg}")
        e("s_nop 0")
        for k in range(3):
            off = f" offset:{1024*k}" if k else ""
            e(f"buffer_load_dwordx4 v{VDMA+k}, s[{srdreg}:{srdreg+3}], s{S_TL+tl} offen{off}{ldflag} lds")

    def qloads():
        for s in range(12):
            off = f" offset:{32*s}" if s else ""
            e(f"buffer_load_dwordx4 v[{Q0+4*s}:{Q0+4*s+3}], v{VQOFF}, s[{SQ}:{SQ+3}], 0 offen{off}{qflag}")

    srd(SK, 6, S_HEAD)
    srd(SQ, 4, S_HEAD)
    dma(SK, 0, slot_const=0)
    qloads()
    dma(SK, 1, slot_const=TILE)
    dma(SK, 2, slot_const=2 * TILE)
    dma(SK, 3, slot_const=3 * TILE)
    c("12 dropped stores keep the vmcnt bookkeeping of the first head identical to the second")
    e(f"s_mov_b32 s{SO}, s10")
    e(f"s_and_b32 s{SO+1}, s11, 0xffff")
    e(f"s_mov_b32 s{SO+2}, 0")
    e(f"s_mov_b32 s{SO+3}, 0x20000")
    for j in range(12):
        e(f"buffer_store_dword v{VOOFF}, v{VOOFF}, s[{SO}:{SO+3}], 0 offen")

    e(".p2align 6" if o.align else "s_nop 0")
    g.lab("L_loop")
    srd(SV, 8, S_HEAD)
    srd(SO, 10, S_HEAD)
    e(f"s_add_u32 s{S_T2}, s{S_HEAD}, {NWG}")
    srd(SK, 6, S_T2, validreg=True)
    srd(SQ, 4, S_T2, validreg=True)

    def step_head(wait_n, srdreg, tl, static_base):
        e(f"s_waitcnt vmcnt({wait_n})")
        e("s_barrier")
        e(f"v_add_u32 v{VCUR}, s{S_CONS}, v{static_base}")
        dma(srdreg, tl, slot_expr_reg=S_FILL)
        e(f"v_xor_b32 v{VCUR+1}, 32, v{VCUR}")
        e(f"v_xor_b32 v{VCUR+2}, 64, v{VCUR}")
        e(f"v_xor_b32 v{VCUR+3}, 0x60, v{VCUR}")
        e(f"s_mov_b32 s{S_FILL}, s{S_CONS}")
        e(f"s_add_u32 s{S_CONS}, s{S_CONS}, {TILE}")
        e(f"s_cmp_eq_u32 s{S_CONS}, {NS*TILE}")
        e(f"s_cselect_b32 s{S_CONS}, 0, s{S_CONS}")

    def qk_step(T):
        frs = [(kt, s) for kt in range(2) for s in range(12)]
        D = o.kdepth

        def rd(i):
            kt, s = frs[i]
            b = KF + 4 * (i % 8)
            off = 12288 * kt + 128 * (s >> 2)
            e(f"ds_read_b128 v[{b}:{b+3}], v{VCUR + (s & 3)} offset:{off}")
        if o.nocompute:
            return
        for i in range(min(D, 24)):
            rd(i)
        for i in range(24):
            if i + D < 24:
                rd(i + D)
            n = min(i + D, 23) - i
            e(f"s_waitcnt lgkmcnt({n})")
            kt, s = frs[i]
            j = 2 * T + kt
            b = KF + 4 * (i % 8)
            d = S0 + 16 * j
            cc = "0" if s == 0 else f"v[{d}:{d+15}]"
            e(f"v_mfma_f32_32x32x16_bf16 v[{d}:{d+15}], v[{b}:{b+3}], v[{Q0+4*s}:{Q0+4*s+3}], {cc}")

    def pv_step(T):
        frs = [(ks, t) for ks in range(4) for t in range(6)]
        D = o.vdepth

        def rd(i):
            ks, t = frs[i]
            b = VF + 4 * (i % 8)
            off = 6144 * ks + 128 * (t >> 1)
            a0 = VCUR + (2 if (t & 1) else 0)
            a1 = a0 + 1
            e(f"ds_read_b64_tr_b16 v[{b}:{b+1}], v{a0} offset:{off}")
            e(f"ds_read_b64_tr_b16 v[{b+2}:{b+3}], v{a1} offset:{off+3072}")
        if o.nocompute:
            return
        for i in range(min(D, 24)):
            rd(i)
        for i in range(24):
            if i + D < 24:
                rd(i + D)
            n = 2 * (min(i + D, 23) - i)
            e(f"s_waitcnt lgkmcnt({n})")
            ks, t = frs[i]
            b = VF + 4 * (i % 8)
            d = O0 + 16 * t
            p = S0 + 4 * (4 * T + ks)
            cc = "0" if (T == 0 and ks == 0) else f"v[{d}:{d+15}]"
            e(f"v_mfma_f32_32x32x16_bf16 v[{d}:{d+15}], v[{b}:{b+3}], v[{p}:{p+3}], {cc}")

    def softmax():
        if o.nocompute:
            return
        MX = VF
        SUM = VF + 4
        TA, TB = VF + 8, VF + 9
        e("s_nop 7")
        vals = list(range(128))
        for k in range(4):
            a, b, cc = vals[:3]
            vals = vals[3:]
            e(f"v_max3_f32 v{MX+k}, v{a}, v{b}, v{cc}")
        k = 0
        while vals:
            a, b = vals[:2]
            vals = vals[2:]
            e(f"v_max3_f32 v{MX+k}, v{MX+k}, v{a}, v{b}")
            k = (k + 1) % 4
        e(f"v_max3_f32 v{MX}, v{MX}, v{MX+1}, v{MX+2}")
        e(f"v_max_f32 v{TA}, v{MX}, v{MX+3}")
        e(f"v_max_f32 v{TB}, v{MX}, v{MX+3}")
        e("s_nop 1")
        e(f"v_permlane32_swap_b32 v{TA}, v{TB}")
        e("s_nop 1")
        e(f"v_max_f32 v{TA}, v{TA}, v{TB}")
        e(f"v_mul_f32 v{VINV}, s{S_NEGC}, v{TA}")
        e(f"v_mov_b32 v{SUM}, 0")
        e(f"v_mov_b32 v{SUM+1}, 0")
        e(f"v_mov_b32 v{SUM+2}, 0")
        e(f"v_mov_b32 v{SUM+3}, 0")

        def A(i):
            e(f"v_pk_fma_f32 v[{2*i}:{2*i+1}], v[{2*i}:{2*i+1}], s[{S_C}:{S_C+1}], v[{VINV}:{VINV+1}] op_sel_hi:[1,0,0]")

        def B(i):
            e(f"v_exp_f32 v{2*i}, v{2*i}")
            e(f"v_exp_f32 v{2*i+1}, v{2*i+1}")

        def C(i):
            s = SUM + 2 * (i & 1)
            e(f"v_pk_add_f32 v[{s}:{s+1}], v[{s}:{s+1}], v[{2*i}:{2*i+1}]")
            e(f"v_cvt_pk_bf16_f32 v{i}, v{2*i}, v{2*i+1}")
        A(0); A(1); B(0)
        for i in range(64):
            if i + 2 < 64:
                A(i + 2)
            if i + 1 < 64:
                B(i + 1)
            else:
                e("s_nop 0")
            C(i)
        e(f"v_pk_add_f32 v[{SUM}:{SUM+1}], v[{SUM}:{SUM+1}], v[{SUM+2}:{SUM+3}]")
        e(f"v_add_f32 v{TA}, v{SUM}, v{SUM+1}")
        e(f"v_add_f32 v{TB}, v{SUM}, v{SUM+1}")
        e("s_nop 1")
        e(f"v_permlane32_swap_b32 v{TA}, v{TB}")
        e("s_nop 1")
        e(f"v_add_f32 v{TA}, v{TA}, v{TB}")
        e(f"v_rcp_f32 v{VINV}, v{TA}")
        e("s_nop 1")

    def epilogue():
        if not o.nocompute:
            e("s_nop 15")
        for rd in range(3):
            if not o.nocompute:
                for tt in range(2):
                    t = 2 * rd + tt
                    for gq in range(4):
                        a = O0 + 16 * t + 4 * gq
                        cidx = 4 * tt + gq
                        e(f"v_pk_mul_f32 v[{a}:{a+1}], v[{a}:{a+1}], v[{VINV}:{VINV+1}] op_sel_hi:[1,0]")
                        e(f"v_pk_mul_f32 v[{a+2}:{a+3}], v[{a+2}:{a+3}], v[{VINV}:{VINV+1}] op_sel_hi:[1,0]")
                        if cidx:
                            e(f"v_xor_b32 v{a+3+0 if False else VTMP}, {16*cidx}, v{VOW}") if False else None
                        e(f"v_cvt_pk_bf16_f32 v{a}, v{a}, v{a+1}")
                        e(f"v_cvt_pk_bf16_f32 v{a+1}, v{a+2}, v{a+3}")
                        if cidx:
                            e(f"v_xor_b32 v{a+2}, {16*cidx}, v{VOW}")
                            e(f"ds_write_b64 v{a+2}, v[{a}:{a+1}]")
                        else:
                            e(f"ds_write_b64 v{VOW}, v[{a}:{a+1}]")
                for j in range(4):
                    b = VF + 16 * (rd & 1) + 4 * j
                    e(f"ds_read_b128 v[{b}:{b+3}], v{VOR} offset:{1024*j}")
            for j in range(4):
                b = VF + 16 * (rd & 1) + 4 * j
                if not o.nocompute:
                    e(f"s_waitcnt lgkmcnt({3-j})")
                off = f" offset:{128*rd}" if rd else ""
                e(f"buffer_store_dwordx4 v[{b}:{b+3}], v{VOOFF}, s[{SO}:{SO+3}], s{S_OS+j} offen{off}{stflag}")

    waits = [21, 21, 21, 21, 9, 21, 21, 21]
    for T in range(4):
        c(f"---- K step {T}")
        step_head(waits[T], SV, T, VKS)
        qk_step(T)
    for T in range(4):
        c(f"---- V step {T}")
        step_head(waits[4 + T], SK, T, VVS)
        if T == 0:
            qloads()
            softmax()
        pv_step(T)
    epilogue()
    e(f"s_add_u32 s{S_HEAD}, s{S_HEAD}, {NWG}")
    e(f"s_cmp_lt_u32 s{S_HEAD}, {NHEADS}")
    e("s_cbranch_scc1 L_loop")
    e("s_waitcnt vmcnt(0)")
    g.lab("L_end")
    e("s_endpgm")

    out += g.L
    out.append('.section .rodata,"a"')
    out.append(".p2align 6")
    out.append(f".amdhsa_kernel {NAME}_kernel")
    out.append("  .amdhsa_next_free_vgpr 256")
    out.append("  .amdhsa_next_free_sgpr 64")
    out.append("  .amdhsa_accum_offset 256")
    out.append("  .amdhsa_group_segment_fixed_size 0")
    out.append("  .amdhsa_kernarg_size 48")
    out.append("  .amdhsa_user_sgpr_count 2")
    out.append("  .amdhsa_user_sgpr_kernarg_segment_ptr 1")
    out.append("  .amdhsa_system_sgpr_workgroup_id_x 1")
    out.append(".end_amdhsa_kernel")
    return "\n".join(out) + "\n"


def main():
    ap = argparse.ArgumentParser()
    ap.add_argument("-o", default="cdna_kernels/" + NAME + ".s")
    ap.add_argument("--ns", type=int, default=5)
    ap.add_argument("--ldflag", default="")
    ap.add_argument("--qflag", default="")
    ap.add_argument("--stflag", default="")
    ap.add_argument("--kdepth", type=int, default=6)
    ap.add_argument("--vdepth", type=int, default=6)
    ap.add_argument("--codepf", type=int, default=0)
    ap.add_argument("--nocompute", action="store_true")
    ap.add_argument("--align", action="store_true")
    o = ap.parse_args()
    open(o.o, "w").write(build(o))


if __name__ == "__main__":
    main()
```

```python
import argparse, struct, math, re

NAME = "standalone__mha_softmax__near_ridge"
ROWB = 384
HEADB = 256 * ROWB
TILE = 16384
NS = 8
NHEADS = 512
NWG = 256
STG = NS * TILE
LDS = STG + 8 * 4096

HEADER = """; Kernarg layout for this problem (48 bytes, ptrs only, base s[0:1]):
"""

S0 = 0
OA = 128
FR = 192
QF = 224
VDMA = 240
VOOFF = 242
VOW = 243
VOR = 244
VKS = 245
VVS = 246
VCUR = 248
VT2 = 253
VINV = 254
SQ, SK, SV, SO = 12, 16, 20, 24
S_HEAD = 28
S_ROT = 29
S_WDMA = 30
S_QOFF = 31
S_C = 32
S_T0 = 34
S_W = 35
S_OS = 36
S_T1 = 40
S_T2 = 41
S_NEGC = 42
S_T3 = 43
S_QH = 44
S_FIRST = 45
S_PC = 48

TILES = []
for c in range(3):
    TILES += [("Q", 0, c), ("Q", 1, c), ("K", 0, c), ("K", 1, c)]
for c in range(3):
    TILES += [("V", 0, c), ("V", 1, c)]
NT = len(TILES)
FIRSTT = [0, 3, 4, 7, 8, 11, 12, 13, 14, 15, 16, 17, 18]
NSTEP = 12
ISSUE = {0: [6], 1: [7, 8, 9], 2: [10], 3: [11, 12, 13], 4: [14], 5: [15, 16, 17], 6: [18], 7: [19], 8: [20],
         9: [21], 10: [22], 11: [23]}


def qf_base(c):
    return QF if (c & 1) == 0 else OA + 32


class Gen:
    def __init__(self, o):
        self.o = o
        self.L = []
        self.ldsq = []
        self.nid = 0
        self.vm = []

    def e(self, s):
        self.L.append("    " + s)

    def c(self, s):
        self.L.append("    ; " + s)

    def lab(self, s):
        self.L.append(s + ":")

    def lds(self, s):
        self.e(s)
        self.nid += 1
        self.ldsq.append(self.nid)
        return self.nid

    def wait_lds(self, ident):
        pos = self.ldsq.index(ident)
        n = len(self.ldsq) - 1 - pos
        self.e(f"s_waitcnt lgkmcnt({min(n, 15)})")
        self.ldsq = self.ldsq[pos + 1:] if n <= 15 else self.ldsq[-15:]


def build(o):
    g = Gen(o)
    e, c_, lab = g.e, g.c, g.lab
    ldflag = (" " + o.ldflag) if o.ldflag else ""
    stflag = (" " + o.stflag) if o.stflag else ""
    D = o.depth

    out = [HEADER + f"; @launch grid=({NWG},1,1) block=(512,1,1) lds={LDS}"]
    out.append('.amdgcn_target "amdgcn-amd-amdhsa--gfx950"')
    out.append(".text")
    out.append(f".globl {NAME}_kernel")
    out.append(".p2align 8")
    out.append(f".type {NAME}_kernel,@function")
    out.append(f"{NAME}_kernel:")

    def stamp():
        if not o.stamps:
            return
        e("s_memtime s[60:61]" if o.cyc else "s_memrealtime s[60:61]")
        e("s_waitcnt lgkmcnt(0)")
        g.ldsq = []
        e("s_lshl_b64 exec, 1, s62")
        e(f"v_mov_b32 v{VT2}, s60")
        e("s_mov_b64 exec, -1")
        e("s_add_u32 s62, s62, 1")

    cval = (192 ** -0.5) * math.log2(math.e)
    cbits = struct.unpack("<I", struct.pack("<f", cval))[0]
    nbits = struct.unpack("<I", struct.pack("<f", -cval))[0]

    def srd(dst, ptr, headreg, valid=False):
        if not valid:
            e(f"s_mul_i32 s{S_T0}, s{headreg}, {HEADB}")
            e(f"s_mov_b32 s{dst+2}, {HEADB}")
        else:
            e(f"s_cmp_lt_u32 s{headreg}, {NHEADS}")
            e(f"s_cselect_b32 s{S_T0}, s{headreg}, 0")
            e(f"s_cselect_b32 s{dst+2}, {HEADB}, 0")
            e(f"s_mul_i32 s{S_T0}, s{S_T0}, {HEADB}")
        e(f"s_add_u32 s{dst}, s{ptr}, s{S_T0}")
        e(f"s_addc_u32 s{dst+1}, s{ptr+1}, 0")
        e(f"s_and_b32 s{dst+1}, s{dst+1}, 0xffff")
        e(f"s_mov_b32 s{dst+3}, 0x20000")

    def slot_addr(dst, n):
        e(f"s_add_u32 s{dst}, s{S_ROT}, {n}")
        e(f"s_and_b32 s{dst}, s{dst}, 7")
        e(f"s_lshl_b32 s{dst}, s{dst}, 14")

    def dma(n, absn):
        t, hh, c = TILES[n % NT]
        srdreg = {"Q": SQ, "K": SK, "V": SV}[t]
        slot_addr(S_T1, n)
        e(f"s_add_u32 m0, s{S_T1}, s{S_WDMA}")
        e(f"s_mov_b32 s{S_T3}, {49152*hh + 128*c}")
        e(f"buffer_load_dwordx4 v{VDMA}, s[{srdreg}:{srdreg+3}], s{S_T3} offen{ldflag} lds")
        e(f"buffer_load_dwordx4 v{VDMA+1}, s[{srdreg}:{srdreg+3}], s{S_T3} offen offset:1024{ldflag} lds")
        g.vm += [("D", absn)] * 2

    e(f"s_cmp_ge_u32 s2, {NWG}")
    e("s_cbranch_scc1 L_end")
    e("s_load_dwordx8 s[4:11], s[0:1], 0")
    if o.dbg:
        e("s_load_dwordx2 s[56:57], s[0:1], 32")
        e("s_memrealtime s[64:65]")
        e("s_memtime s[66:67]")
    if o.stamps:
        e("s_mov_b32 s62, 0")
        e(f"v_mov_b32 v{VT2}, 0")
        stamp()
        e("s_load_dwordx2 s[56:57], s[0:1], 40")
    e("v_lshrrev_b32 v1, 6, v0")
    e("v_and_b32 v2, 63, v0")
    e(f"v_readfirstlane_b32 s{S_W}, v1")
    e(f"s_mov_b32 s{S_HEAD}, s2")
    e(f"s_mov_b32 s{S_ROT}, 0")
    e(f"s_mov_b32 s{S_FIRST}, 1")
    e(f"s_lshl_b32 s{S_WDMA}, s{S_W}, 11")
    e(f"s_movk_i32 s{S_T2}, {ROWB}")
    e("v_lshrrev_b32 v3, 3, v2")
    e(f"s_lshl_b32 s{S_T0}, s{S_W}, 4")
    e(f"v_add_u32 v4, s{S_T0}, v3")
    e(f"v_mul_lo_u32 v4, v4, s{S_T2}")
    e("v_bfe_u32 v5, v2, 4, 1")
    e("v_lshlrev_b32 v5, 2, v5")
    e("v_lshrrev_b32 v6, 5, v2")
    e("v_or_b32 v5, v5, v6")
    e("v_and_b32 v7, 7, v2")
    e("v_xor_b32 v8, v7, v5")
    e("v_lshlrev_b32 v8, 4, v8")
    e(f"v_add_u32 v{VDMA}, v4, v8")
    e("v_xor_b32 v8, 32, v8")
    e("v_add_u32 v8, v4, v8")
    e(f"v_add_u32 v{VDMA+1}, {8*ROWB-1024}, v8")
    e("s_waitcnt lgkmcnt(0)")
    srd(SQ, 4, S_HEAD)
    srd(SK, 6, S_HEAD)
    for n in range(0, ISSUE[0][0]):
        dma(n, n)
    if o.codepf:
        c_("warm the L2 with this kernel's own code")
        e(f"s_getpc_b64 s[{S_PC}:{S_PC+1}]")
        e(f"s_and_b32 s{S_PC}, s{S_PC}, 0xffffff00")
        e("v_lshlrev_b32 v9, 4, v0")
        for j in range(o.codepf):
            if j:
                e("v_add_u32 v9, 8192, v9")
            e(f"global_load_dwordx4 v[{64+4*j}:{64+4*j+3}], v9, s[{S_PC}:{S_PC+1}]")
            g.vm.append(("X",))
    e(f"s_mov_b32 s{S_C}, {cbits:#x}")
    e(f"s_mov_b32 s{S_C+1}, {cbits:#x}")
    e(f"s_mov_b32 s{S_NEGC}, {nbits:#x}")
    for j in range(4):
        e(f"s_mov_b32 s{S_OS+j}, {3072*j}")
    e(f"s_and_b32 s{S_QOFF}, s{S_W}, 3")
    e(f"s_lshl_b32 s{S_QOFF}, s{S_QOFF}, 12")
    e(f"s_lshr_b32 s{S_QH}, s{S_W}, 2")
    c_("null output descriptor: the first head has no predecessor whose last columns are still to be stored")
    e(f"s_mov_b32 s{SO}, s10")
    e(f"s_and_b32 s{SO+1}, s11, 0xffff")
    e(f"s_mov_b32 s{SO+2}, 0")
    e(f"s_mov_b32 s{SO+3}, 0x20000")
    e("v_and_b32 v3, 31, v2")
    e("v_and_b32 v4, 2, v3")
    e("v_lshlrev_b32 v4, 1, v4")
    e("v_bfe_u32 v5, v3, 2, 2")
    e("v_or_b32 v4, v4, v5")
    e("v_xor_b32 v4, v4, v6")
    e("v_lshlrev_b32 v4, 4, v4")
    e("v_lshlrev_b32 v5, 7, v3")
    e(f"v_add_u32 v{VKS}, v5, v4")
    e(f"s_lshl_b32 s{S_T0}, s{S_W}, 12")
    e(f"s_add_u32 s{S_T0}, s{S_T0}, {STG}")
    e("v_and_b32 v4, 7, v3")
    e("v_lshlrev_b32 v4, 4, v4")
    e("v_add_u32 v5, v5, v4")
    e("v_lshlrev_b32 v4, 3, v6")
    e("v_add_u32 v5, v5, v4")
    e(f"v_add_u32 v{VOW}, s{S_T0}, v5")
    e("v_lshrrev_b32 v5, 3, v2")
    e("v_xor_b32 v8, v5, v7")
    e("v_lshlrev_b32 v8, 4, v8")
    e("v_lshlrev_b32 v4, 7, v5")
    e("v_add_u32 v8, v8, v4")
    e(f"v_add_u32 v{VOR}, s{S_T0}, v8")
    e(f"s_lshl_b32 s{S_T0}, s{S_W}, 5")
    e(f"v_add_u32 v5, s{S_T0}, v5")
    e(f"v_mul_lo_u32 v5, v5, s{S_T2}")
    e("v_lshlrev_b32 v4, 4, v7")
    e(f"v_add_u32 v{VOOFF}, v5, v4")
    e("v_bfe_u32 v5, v2, 2, 2")
    e("v_lshlrev_b32 v4, 2, v6")
    e("v_add_u32 v4, v4, v5")
    e("v_lshlrev_b32 v4, 7, v4")
    e("v_lshrrev_b32 v8, 1, v5")
    e("v_lshlrev_b32 v8, 2, v8")
    e("v_or_b32 v8, v8, v6")
    e("v_bfe_u32 v9, v2, 4, 1")
    e("v_lshlrev_b32 v9, 1, v9")
    e("v_bfe_u32 v10, v2, 1, 1")
    e("v_or_b32 v9, v9, v10")
    e("v_xor_b32 v8, v8, v9")
    e("v_lshlrev_b32 v8, 4, v8")
    e("v_add_u32 v4, v4, v8")
    e("v_and_b32 v9, 1, v2")
    e("v_lshlrev_b32 v9, 3, v9")
    e(f"v_add_u32 v{VVS}, v4, v9")

    slots = []
    for k in range(6):
        c, kh = k // 2, k % 2
        for kt in range(4):
            for s in range(4):
                slots.append(("K", k, c, kh, kt, s))
    for k in range(6, 12):
        c, kh = (k - 6) // 2, (k - 6) % 2
        for ks in range(8):
            for tt in range(2):
                slots.append(("V", k, c, kh, ks, tt))
    NSL = len(slots)
    rd_ids = {}
    q_ids = {}

    def cur_bases(static, tile):
        slot_addr(S_T1, tile)
        e(f"v_add_u32 v{VCUR}, s{S_T1}, v{static}")
        e(f"v_xor_b32 v{VCUR+1}, 32, v{VCUR}")
        e(f"v_xor_b32 v{VCUR+2}, 64, v{VCUR}")
        e(f"v_xor_b32 v{VCUR+3}, 0x60, v{VCUR}")

    wait_marks = []

    def barrier_seq(k, base, absbase):
        need = absbase + FIRSTT[k + 1] - 1
        g.L.append(f"@@WAIT {len(wait_marks)}")
        wait_marks.append((k, need))
        g.vm.append(("W", len(wait_marks) - 1, need))
        e("s_barrier")
        if not o.nostampb:
            stamp()
        if k < 6:
            c, kh = k // 2, k % 2
            if kh == 0:
                e(f"s_add_u32 s{S_T1}, s{S_ROT}, s{S_QH}")
                e(f"s_add_u32 s{S_T1}, s{S_T1}, {base + FIRSTT[k]}")
                e(f"s_and_b32 s{S_T1}, s{S_T1}, 7")
                e(f"s_lshl_b32 s{S_T1}, s{S_T1}, 14")
                e(f"s_add_u32 s{S_T1}, s{S_T1}, s{S_QOFF}")
                e(f"v_add_u32 v{VCUR}, s{S_T1}, v{VKS}")
                e(f"v_xor_b32 v{VCUR+1}, 32, v{VCUR}")
                e(f"v_xor_b32 v{VCUR+2}, 64, v{VCUR}")
                e(f"v_xor_b32 v{VCUR+3}, 0x60, v{VCUR}")
                qb = qf_base(c)
                for s in range(4):
                    i_ = g.lds(f"ds_read_b128 v[{qb+4*s}:{qb+4*s+3}], v{VCUR+s}")
                q_ids[c] = i_
                cur_bases(VKS, base + FIRSTT[k] + 2)
            else:
                cur_bases(VKS, base + FIRSTT[k])
        else:
            cur_bases(VVS, base + FIRSTT[k])

    def rd(i):
        sl = slots[i % NSL]
        b = FR + 4 * (i % 8)
        if sl[0] == "K":
            _, k, c, kh, kt, s = sl
            rd_ids[i % NSL] = g.lds(f"ds_read_b128 v[{b}:{b+3}], v{VCUR+s} offset:{4096*kt}")
        else:
            _, k, c, kh, ks, tt = sl
            a0 = VCUR + 2 * tt
            g.lds(f"ds_read_b64_tr_b16 v[{b}:{b+1}], v{a0} offset:{2048*ks}")
            rd_ids[i % NSL] = g.lds(f"ds_read_b64_tr_b16 v[{b+2}:{b+3}], v{a0+1} offset:{2048*ks+1024}")

    def mfma(i):
        sl = slots[i]
        b = FR + 4 * (i % 8)
        if sl[0] == "K":
            _, k, c, kh, kt, s = sl
            d = S0 + 16 * (4 * kh + kt)
            qb = qf_base(c)
            cc = "0" if (c == 0 and s == 0) else f"v[{d}:{d+15}]"
            e(f"v_mfma_f32_32x32x16_bf16 v[{d}:{d+15}], v[{b}:{b+3}], v[{qb+4*s}:{qb+4*s+3}], {cc}")
        else:
            _, k, c, kh, ks, tt = sl
            d = OA + 32 * (c & 1) + 16 * tt
            p = S0 + 4 * (8 * kh + ks)
            cc = "0" if (kh == 0 and ks == 0) else f"v[{d}:{d+15}]"
            e(f"v_mfma_f32_32x32x16_bf16 v[{d}:{d+15}], v[{b}:{b+3}], v[{p}:{p+3}], {cc}")

    def softmax():
        MX = OA + 48
        SUM = MX + 4
        TA, TB = MX + 8, MX + 9
        e("s_nop 7")
        vals = list(range(128))
        for k in range(4):
            a, b, cc = vals[:3]
            vals = vals[3:]
            e(f"v_max3_f32 v{MX+k}, v{a}, v{b}, v{cc}")
        k = 0
        while vals:
            a, b = vals[:2]
            vals = vals[2:]
            e(f"v_max3_f32 v{MX+k}, v{MX+k}, v{a}, v{b}")
            k = (k + 1) % 4
        e(f"v_max3_f32 v{MX}, v{MX}, v{MX+1}, v{MX+2}")
        e(f"v_max_f32 v{TA}, v{MX}, v{MX+3}")
        e(f"v_max_f32 v{TB}, v{MX}, v{MX+3}")
        e("s_nop 1")
        e(f"v_permlane32_swap_b32 v{TA}, v{TB}")
        e("s_nop 1")
        e(f"v_max_f32 v{TA}, v{TA}, v{TB}")
        e(f"v_mul_f32 v{VINV}, s{S_NEGC}, v{TA}")
        for i in range(4):
            e(f"v_mov_b32 v{SUM+i}, 0")

        def A(i):
            e(f"v_pk_fma_f32 v[{2*i}:{2*i+1}], v[{2*i}:{2*i+1}], s[{S_C}:{S_C+1}], v[{VINV}:{VINV+1}] op_sel_hi:[1,0,0]")

        def B(i):
            e(f"v_exp_f32 v{2*i}, v{2*i}")
            e(f"v_exp_f32 v{2*i+1}, v{2*i+1}")

        def C(i):
            s = SUM + 2 * (i & 1)
            e(f"v_pk_add_f32 v[{s}:{s+1}], v[{s}:{s+1}], v[{2*i}:{2*i+1}]")
            e(f"v_cvt_pk_bf16_f32 v{i}, v{2*i}, v{2*i+1}")
        A(0); A(1); B(0)
        for i in range(64):
            if i + 2 < 64:
                A(i + 2)
            if i + 1 < 64:
                B(i + 1)
            else:
                e("s_nop 0")
            C(i)
        e(f"v_pk_add_f32 v[{SUM}:{SUM+1}], v[{SUM}:{SUM+1}], v[{SUM+2}:{SUM+3}]")
        e(f"v_add_f32 v{TA}, v{SUM}, v{SUM+1}")
        e(f"v_add_f32 v{TB}, v{SUM}, v{SUM+1}")
        e("s_nop 1")
        e(f"v_permlane32_swap_b32 v{TA}, v{TB}")
        e("s_nop 1")
        e(f"v_add_f32 v{TA}, v{TA}, v{TB}")
        e(f"v_rcp_f32 v{VINV}, v{TA}")
        e("s_nop 1")

    def epi_parts(c):
        parts = []
        tmp = QF if c < 2 else OA + 48
        st = {}
        for tt in range(2):
            for gq in range(4):
                def f(tt=tt, gq=gq):
                    a = OA + 32 * (c & 1) + 16 * tt + 4 * gq
                    cidx = 4 * tt + gq
                    e(f"v_pk_mul_f32 v[{a}:{a+1}], v[{a}:{a+1}], v[{VINV}:{VINV+1}] op_sel_hi:[1,0]")
                    e(f"v_pk_mul_f32 v[{a+2}:{a+3}], v[{a+2}:{a+3}], v[{VINV}:{VINV+1}] op_sel_hi:[1,0]")
                    e(f"v_cvt_pk_bf16_f32 v{a}, v{a}, v{a+1}")
                    e(f"v_cvt_pk_bf16_f32 v{a+1}, v{a+2}, v{a+3}")
                    if cidx:
                        e(f"v_xor_b32 v{a+2}, {16*cidx}, v{VOW}")
                        g.lds(f"ds_write_b64 v{a+2}, v[{a}:{a+1}]")
                    else:
                        g.lds(f"ds_write_b64 v{VOW}, v[{a}:{a+1}]")
                parts.append(f)

        def reads():
            for j in range(4):
                st[j] = g.lds(f"ds_read_b128 v[{tmp+4*j}:{tmp+4*j+3}], v{VOR} offset:{1024*j}")
        parts.append(reads)
        for j in range(4):
            def f(j=j):
                if st[j] in g.ldsq:
                    g.wait_lds(st[j])
                off = f" offset:{128*c}" if c else ""
                e(f"buffer_store_dwordx4 v[{tmp+4*j}:{tmp+4*j+3}], v{VOOFF}, s[{SO}:{SO+3}], s{S_OS+j} offen{off}{stflag}")
                g.vm.append(("S",))
            parts.append(f)
        return parts

    g.vm.append(("LOOPSTART0",))
    barrier_seq(0, 0, 0)
    for n in ISSUE[0]:
        dma(n, n)
    for i in range(D):
        rd(i)
    ldsq_top = len(g.ldsq)

    lab("L_loop")
    g.vm.append(("LOOP",))
    srd(SV, 8, S_HEAD)

    fill = {i: [] for i in range(NSL)}

    def place_epi(c, step):
        parts = epi_parts(c)
        base = 16 * step
        pos = [2, 3, 4, 5, 6, 7, 8, 9, 10, 12, 13, 14, 15]
        for p, f in zip(pos, parts):
            fill[base + p].append(f)
    place_epi(2, 0)
    place_epi(0, 8)
    place_epi(1, 10)
    fill[16 * 1 + 2].append(lambda: srd(SO, 10, S_HEAD))

    def next_srds():
        e(f"s_add_u32 s{S_T2}, s{S_HEAD}, {NWG}")
        srd(SQ, 4, S_T2, valid=True)
        srd(SK, 6, S_T2, valid=True)
    fill[16 * 4 + 2].append(next_srds)

    pend_dma = []
    for i in range(NSL):
        k = i // 16
        if i % 16 == 0:
            c_(f"---- step {k}")
        j = i + D
        if j % 16 == 0:
            kk = (j // 16) % NSTEP
            wrap = j >= NSL
            barrier_seq(kk, NT if wrap else 0, NT if wrap else 0)
            pend_dma += [n + (NT if wrap else 0) for n in ISSUE[kk]]
        rd(j)
        if slots[i][0] == "K" and slots[i][4] == 0 and slots[i][5] == 0 and slots[i][3] == 0:
            pass
        if rd_ids[i] in g.ldsq:
            g.wait_lds(rd_ids[i])
        mfma(i)
        if pend_dma:
            n = pend_dma.pop(0)
            dma(n, n)
        for f in fill[i]:
            f()
        if i == 95:
            softmax()
            stamp()
    assert not pend_dma
    assert len(g.ldsq) == ldsq_top or o.stamps, (len(g.ldsq), ldsq_top)
    stamp()
    e(f"s_add_u32 s{S_HEAD}, s{S_HEAD}, {NWG}")
    e(f"s_add_u32 s{S_ROT}, s{S_ROT}, {NT % NS}")
    e(f"s_mov_b32 s{S_FIRST}, 0")
    e(f"s_cmp_lt_u32 s{S_HEAD}, {NHEADS}")
    e("s_cbranch_scc1 L_loop")
    g.vm.append(("LOOPEND",))
    c_("last head: remaining columns")
    e("s_nop 15")
    g.ldsq = []
    for f in epi_parts(2):
        f()
    e("s_waitcnt vmcnt(0)")
    if o.dbg:
        e("s_memrealtime s[60:61]")
        e("s_memtime s[62:63]")
        e("s_waitcnt lgkmcnt(0)")
        e("s_sub_u32 s62, s62, s66")
        e("s_not_b32 s64, s64")
        e("s_sub_u32 s61, s60, s64")
        e("v_mov_b32 v1, 0")
        e("v_mov_b32 v2, s64")
        e("v_mov_b32 v3, s60")
        e("v_mov_b32 v4, s62")
        e("s_mov_b64 exec, 1")
        e("global_atomic_umax v1, v2, s[56:57]")
        e("global_atomic_umax v1, v3, s[56:57] offset:4")
        e("global_atomic_umax v1, v4, s[56:57] offset:8")
        e("s_waitcnt vmcnt(0)")
    if o.stamps:
        stamp()
        e("s_lshl_b32 s58, s2, 8")
        e("s_add_u32 s56, s56, s58")
        e("s_addc_u32 s57, s57, 0")
        e("v_mbcnt_lo_u32_b32 v1, -1, 0")
        e("v_mbcnt_hi_u32_b32 v1, -1, v1")
        e("v_lshlrev_b32 v1, 2, v1")
        e(f"s_cmp_eq_u32 s{S_W}, 0")
        e("s_cbranch_scc0 L_end")
        e(f"global_store_dword v1, v{VT2}, s[56:57]")
        e("s_waitcnt vmcnt(0)")
    lab("L_end")
    e("s_endpgm")

    i0 = g.vm.index(("LOOP",))
    i1 = g.vm.index(("LOOPEND",))
    pro = [x for x in g.vm[:i0] if x[0] in ("D", "S", "X", "W")]
    body = g.vm[i0 + 1:i1]
    res = {}
    ops = []
    for x in pro:
        if x[0] == "W":
            idx = max(i for i, y in enumerate(ops) if y == ("D", x[2]))
            res[(x[1], 0)] = len(ops) - 1 - idx
        else:
            ops.append(x)
    for it in range(3):
        for x in body:
            if x[0] == "W":
                need = x[2] + NT * it
                idx = max(i for i, y in enumerate(ops) if y == ("D", need))
                res[(x[1], it)] = len(ops) - 1 - idx
            elif x[0] == "D":
                ops.append(("D", x[1] + NT * it))
            else:
                ops.append(x)
    lines = []
    for ln in g.L:
        if ln.startswith("@@WAIT"):
            w = int(ln.split()[1])
            if w == 0:
                lines.append(f"    s_waitcnt vmcnt({res[(0, 0)]})")
                continue
            f0, s1, s2 = res[(w, 0)], res[(w, 1)], res[(w, 2)]
            assert s1 == s2, (w, s1, s2)
            lines.append(f"    s_waitcnt vmcnt({min(s1, 63)})")
            if f0 < s1:
                lines.append(f"    s_cmp_eq_u32 s{S_FIRST}, 0")
                lines.append(f"    s_cbranch_scc1 L_w{w}")
                lines.append(f"    s_waitcnt vmcnt({f0})")
                lines.append(f"L_w{w}:")
        else:
            lines.append(ln)

    out += lines
    out.append('.section .rodata,"a"')
    out.append(".p2align 6")
    out.append(f".amdhsa_kernel {NAME}_kernel")
    out.append("  .amdhsa_next_free_vgpr 256")
    out.append("  .amdhsa_next_free_sgpr 72")
    out.append("  .amdhsa_accum_offset 256")
    out.append("  .amdhsa_group_segment_fixed_size 0")
    out.append("  .amdhsa_kernarg_size 48")
    out.append("  .amdhsa_user_sgpr_count 2")
    out.append("  .amdhsa_user_sgpr_kernarg_segment_ptr 1")
    out.append("  .amdhsa_system_sgpr_workgroup_id_x 1")
    out.append(".end_amdhsa_kernel")
    return "\n".join(out) + "\n"


def main():
    ap = argparse.ArgumentParser()
    ap.add_argument("-o", default="cdna_kernels/" + NAME + ".s")
    ap.add_argument("--ldflag", default="nt")
    ap.add_argument("--stflag", default="sc0 sc1")
    ap.add_argument("--depth", type=int, default=6)
    ap.add_argument("--codepf", type=int, default=0)
    ap.add_argument("--stamps", action="store_true")
    ap.add_argument("--nostampb", action="store_true")
    ap.add_argument("--cyc", action="store_true")
    ap.add_argument("--dbg", action="store_true")
    o = ap.parse_args()
    open(o.o, "w").write(build(o))


if __name__ == "__main__":
    main()
```

```python
import argparse, struct, math, re

NAME = "standalone__mha_softmax__near_ridge"
ROWB = 384
HEADB = 256 * ROWB
TILE = 16384
NS = 8
NHEADS = 512
NWG = 256
STG = NS * TILE
LDS = STG + 8 * 4096

HEADER = """; Kernarg layout for this problem (48 bytes, ptrs only, base s[0:1]):
"""

S0 = 0
OA = 128
FR = 192
QF = 224
VDMA = 240
VOOFF = 242
VOW = 243
VOR = 244
VKS = 245
VVS = 246
VCUR = 248
VT2 = 253
VINV = 254
SQ, SK, SV, SO = 12, 16, 20, 24
S_HEAD = 28
S_ROT = 29
S_WDMA = 30
S_QOFF = 31
S_C = 32
S_T0 = 34
S_W = 35
S_OS = 36
S_T1 = 40
S_T2 = 41
S_NEGC = 42
S_T3 = 43
S_QH = 44
S_FIRST = 45
S_PC = 48

TILES = []
for c in range(3):
    TILES += [("Q", 0, c), ("Q", 1, c), ("K", 0, c), ("K", 1, c)]
for c in range(3):
    TILES += [("V", 0, c), ("V", 1, c)]
NT = len(TILES)
FIRSTT = [0, 3, 4, 7, 8, 11, 12, 13, 14, 15, 16, 17, 18]
NSTEP = 12
ISSUE = {0: [6], 1: [7, 8, 9], 2: [10], 3: [11, 12, 13], 4: [14], 5: [15, 16, 17], 6: [18], 7: [19], 8: [20],
         9: [21], 10: [22], 11: [23]}


def qf_base(c):
    return QF if (c & 1) == 0 else OA + 32


class Gen:
    def __init__(self, o):
        self.o = o
        self.L = []
        self.ldsq = []
        self.nid = 0
        self.vm = []

    def e(self, s):
        self.L.append("    " + s)

    def c(self, s):
        self.L.append("    ; " + s)

    def lab(self, s):
        self.L.append(s + ":")

    def lds(self, s):
        self.e(s)
        self.nid += 1
        self.ldsq.append(self.nid)
        return self.nid

    def wait_lds(self, ident):
        pos = self.ldsq.index(ident)
        n = len(self.ldsq) - 1 - pos
        self.e(f"s_waitcnt lgkmcnt({min(n, 15)})")
        self.ldsq = self.ldsq[pos + 1:] if n <= 15 else self.ldsq[-15:]


def build(o):
    g = Gen(o)
    e, c_, lab = g.e, g.c, g.lab
    ldflag = (" " + o.ldflag) if o.ldflag else ""
    stflag = (" " + o.stflag) if o.stflag else ""
    D = o.depth

    out = [HEADER + f"; @launch grid=({NWG},1,1) block=(512,1,1) lds={LDS}"]
    out.append('.amdgcn_target "amdgcn-amd-amdhsa--gfx950"')
    out.append(".text")
    out.append(f".globl {NAME}_kernel")
    out.append(".p2align 8")
    out.append(f".type {NAME}_kernel,@function")
    out.append(f"{NAME}_kernel:")

    def stamp():
        if not o.stamps:
            return
        e("s_memtime s[60:61]" if o.cyc else "s_memrealtime s[60:61]")
        e("s_waitcnt lgkmcnt(0)")
        g.ldsq = []
        e("s_lshl_b64 exec, 1, s62")
        e(f"v_mov_b32 v{VT2}, s60")
        e("s_mov_b64 exec, -1")
        e("s_add_u32 s62, s62, 1")

    cval = (192 ** -0.5) * math.log2(math.e)
    cbits = struct.unpack("<I", struct.pack("<f", cval))[0]
    nbits = struct.unpack("<I", struct.pack("<f", -cval))[0]

    def srd(dst, ptr, headreg, valid=False):
        if not valid:
            e(f"s_mul_i32 s{S_T0}, s{headreg}, {HEADB}")
            e(f"s_mov_b32 s{dst+2}, {HEADB}")
        else:
            e(f"s_cmp_lt_u32 s{headreg}, {NHEADS}")
            e(f"s_cselect_b32 s{S_T0}, s{headreg}, 0")
            e(f"s_cselect_b32 s{dst+2}, {HEADB}, 0")
            e(f"s_mul_i32 s{S_T0}, s{S_T0}, {HEADB}")
        e(f"s_add_u32 s{dst}, s{ptr}, s{S_T0}")
        e(f"s_addc_u32 s{dst+1}, s{ptr+1}, 0")
        e(f"s_and_b32 s{dst+1}, s{dst+1}, 0xffff")
        e(f"s_mov_b32 s{dst+3}, 0x20000")

    def slot_addr(dst, n):
        e(f"s_add_u32 s{dst}, s{S_ROT}, {n}")
        e(f"s_and_b32 s{dst}, s{dst}, 7")
        e(f"s_lshl_b32 s{dst}, s{dst}, 14")

    def dma(n, absn):
        t, hh, c = TILES[n % NT]
        srdreg = {"Q": SQ, "K": SK, "V": SV}[t]
        slot_addr(S_T1, n)
        e(f"s_add_u32 m0, s{S_T1}, s{S_WDMA}")
        e(f"s_mov_b32 s{S_T3}, {49152*hh + 128*c}")
        e(f"buffer_load_dwordx4 v{VDMA}, s[{srdreg}:{srdreg+3}], s{S_T3} offen{ldflag} lds")
        e(f"buffer_load_dwordx4 v{VDMA+1}, s[{srdreg}:{srdreg+3}], s{S_T3} offen offset:1024{ldflag} lds")
        g.vm += [("D", absn)] * 2

    e(f"s_cmp_ge_u32 s2, {NWG}")
    e("s_cbranch_scc1 L_end")
    e("s_load_dwordx8 s[4:11], s[0:1], 0")
    if o.dbg:
        e("s_load_dwordx2 s[56:57], s[0:1], 32")
        e("s_memrealtime s[64:65]")
        e("s_memtime s[66:67]")
    if o.stamps:
        e("s_mov_b32 s62, 0")
        e(f"v_mov_b32 v{VT2}, 0")
        stamp()
        e("s_load_dwordx2 s[56:57], s[0:1], 40")
    e("v_lshrrev_b32 v1, 6, v0")
    e("v_and_b32 v2, 63, v0")
    e(f"v_readfirstlane_b32 s{S_W}, v1")
    e(f"s_mov_b32 s{S_HEAD}, s2")
    e(f"s_mov_b32 s{S_ROT}, 0")
    e(f"s_mov_b32 s{S_FIRST}, 1")
    e(f"s_lshl_b32 s{S_WDMA}, s{S_W}, 11")
    e(f"s_movk_i32 s{S_T2}, {ROWB}")
    e("v_lshrrev_b32 v3, 3, v2")
    e(f"s_lshl_b32 s{S_T0}, s{S_W}, 4")
    e(f"v_add_u32 v4, s{S_T0}, v3")
    e(f"v_mul_lo_u32 v4, v4, s{S_T2}")
    e("v_bfe_u32 v5, v2, 4, 1")
    e("v_lshlrev_b32 v5, 2, v5")
    e("v_lshrrev_b32 v6, 5, v2")
    e("v_or_b32 v5, v5, v6")
    e("v_and_b32 v7, 7, v2")
    e("v_xor_b32 v8, v7, v5")
    e("v_lshlrev_b32 v8, 4, v8")
    e(f"v_add_u32 v{VDMA}, v4, v8")
    e("v_xor_b32 v8, 32, v8")
    e("v_add_u32 v8, v4, v8")
    e(f"v_add_u32 v{VDMA+1}, {8*ROWB-1024}, v8")
    e("s_waitcnt lgkmcnt(0)")
    srd(SQ, 4, S_HEAD)
    srd(SK, 6, S_HEAD)
    for n in range(0, ISSUE[0][0]):
        dma(n, n)
    if o.codepf:
        c_("warm the L2 with this kernel's own code")
        e(f"s_getpc_b64 s[{S_PC}:{S_PC+1}]")
        e(f"s_and_b32 s{S_PC}, s{S_PC}, 0xffffff00")
        e("v_lshlrev_b32 v9, 4, v0")
        for j in range(o.codepf):
            if j:
                e("v_add_u32 v9, 8192, v9")
            e(f"global_load_dwordx4 v[{64+4*j}:{64+4*j+3}], v9, s[{S_PC}:{S_PC+1}]")
            g.vm.append(("X",))
    e(f"s_mov_b32 s{S_C}, {cbits:#x}")
    e(f"s_mov_b32 s{S_C+1}, {cbits:#x}")
    e(f"s_mov_b32 s{S_NEGC}, {nbits:#x}")
    for j in range(4):
        e(f"s_mov_b32 s{S_OS+j}, {3072*j}")
    e(f"s_and_b32 s{S_QOFF}, s{S_W}, 3")
    e(f"s_lshl_b32 s{S_QOFF}, s{S_QOFF}, 12")
    e(f"s_lshr_b32 s{S_QH}, s{S_W}, 2")
    c_("null output descriptor: the first head has no predecessor whose last columns are still to be stored")
    e(f"s_mov_b32 s{SO}, s10")
    e(f"s_and_b32 s{SO+1}, s11, 0xffff")
    e(f"s_mov_b32 s{SO+2}, 0")
    e(f"s_mov_b32 s{SO+3}, 0x20000")
    e("v_and_b32 v3, 31, v2")
    e("v_and_b32 v4, 2, v3")
    e("v_lshlrev_b32 v4, 1, v4")
    e("v_bfe_u32 v5, v3, 2, 2")
    e("v_or_b32 v4, v4, v5")
    e("v_xor_b32 v4, v4, v6")
    e("v_lshlrev_b32 v4, 4, v4")
    e("v_lshlrev_b32 v5, 7, v3")
    e(f"v_add_u32 v{VKS}, v5, v4")
    e(f"s_lshl_b32 s{S_T0}, s{S_W}, 12")
    e(f"s_add_u32 s{S_T0}, s{S_T0}, {STG}")
    e("v_and_b32 v4, 7, v3")
    e("v_lshlrev_b32 v4, 4, v4")
    e("v_add_u32 v5, v5, v4")
    e("v_lshlrev_b32 v4, 3, v6")
    e("v_add_u32 v5, v5, v4")
    e(f"v_add_u32 v{VOW}, s{S_T0}, v5")
    e("v_lshrrev_b32 v5, 3, v2")
    e("v_xor_b32 v8, v5, v7")
    e("v_lshlrev_b32 v8, 4, v8")
    e("v_lshlrev_b32 v4, 7, v5")
    e("v_add_u32 v8, v8, v4")
    e(f"v_add_u32 v{VOR}, s{S_T0}, v8")
    e(f"s_lshl_b32 s{S_T0}, s{S_W}, 5")
    e(f"v_add_u32 v5, s{S_T0}, v5")
    e(f"v_mul_lo_u32 v5, v5, s{S_T2}")
    e("v_lshlrev_b32 v4, 4, v7")
    e(f"v_add_u32 v{VOOFF}, v5, v4")
    e("v_bfe_u32 v5, v2, 2, 2")
    e("v_lshlrev_b32 v4, 2, v6")
    e("v_add_u32 v4, v4, v5")
    e("v_lshlrev_b32 v4, 7, v4")
    e("v_lshrrev_b32 v8, 1, v5")
    e("v_lshlrev_b32 v8, 2, v8")
    e("v_or_b32 v8, v8, v6")
    e("v_bfe_u32 v9, v2, 4, 1")
    e("v_lshlrev_b32 v9, 1, v9")
    e("v_bfe_u32 v10, v2, 1, 1")
    e("v_or_b32 v9, v9, v10")
    e("v_xor_b32 v8, v8, v9")
    e("v_lshlrev_b32 v8, 4, v8")
    e("v_add_u32 v4, v4, v8")
    e("v_and_b32 v9, 1, v2")
    e("v_lshlrev_b32 v9, 3, v9")
    e(f"v_add_u32 v{VVS}, v4, v9")

    slots = []
    for k in range(6):
        c, kh = k // 2, k % 2
        for kt in range(4):
            for s in range(4):
                slots.append(("K", k, c, kh, kt, s))
    for k in range(6, 12):
        c, kh = (k - 6) // 2, (k - 6) % 2
        for ks in range(8):
            for tt in range(2):
                slots.append(("V", k, c, kh, ks, tt))
    NSL = len(slots)
    rd_ids = {}
    q_ids = {}

    def cur_bases(static, tile):
        slot_addr(S_T1, tile)
        e(f"v_add_u32 v{VCUR}, s{S_T1}, v{static}")
        e(f"v_xor_b32 v{VCUR+1}, 32, v{VCUR}")
        e(f"v_xor_b32 v{VCUR+2}, 64, v{VCUR}")
        e(f"v_xor_b32 v{VCUR+3}, 0x60, v{VCUR}")

    wait_marks = []

    def barrier_seq(k, base, absbase):
        need = absbase + FIRSTT[k + 1] - 1
        g.L.append(f"@@WAIT {len(wait_marks)}")
        wait_marks.append((k, need))
        g.vm.append(("W", len(wait_marks) - 1, need))
        e("s_barrier")
        if not o.nostampb:
            stamp()
        if k < 6:
            c, kh = k // 2, k % 2
            if kh == 0:
                e(f"s_add_u32 s{S_T1}, s{S_ROT}, s{S_QH}")
                e(f"s_add_u32 s{S_T1}, s{S_T1}, {base + FIRSTT[k]}")
                e(f"s_and_b32 s{S_T1}, s{S_T1}, 7")
                e(f"s_lshl_b32 s{S_T1}, s{S_T1}, 14")
                e(f"s_add_u32 s{S_T1}, s{S_T1}, s{S_QOFF}")
                e(f"v_add_u32 v{VCUR}, s{S_T1}, v{VKS}")
                e(f"v_xor_b32 v{VCUR+1}, 32, v{VCUR}")
                e(f"v_xor_b32 v{VCUR+2}, 64, v{VCUR}")
                e(f"v_xor_b32 v{VCUR+3}, 0x60, v{VCUR}")
                qb = qf_base(c)
                for s in range(4):
                    i_ = g.lds(f"ds_read_b128 v[{qb+4*s}:{qb+4*s+3}], v{VCUR+s}")
                q_ids[c] = i_
                cur_bases(VKS, base + FIRSTT[k] + 2)
            else:
                cur_bases(VKS, base + FIRSTT[k])
        else:
            cur_bases(VVS, base + FIRSTT[k])

    def rd(i):
        sl = slots[i % NSL]
        b = FR + 4 * (i % 8)
        if sl[0] == "K":
            _, k, c, kh, kt, s = sl
            rd_ids[i % NSL] = g.lds(f"ds_read_b128 v[{b}:{b+3}], v{VCUR+s} offset:{4096*kt}")
        else:
            _, k, c, kh, ks, tt = sl
            a0 = VCUR + 2 * tt
            g.lds(f"ds_read_b64_tr_b16 v[{b}:{b+1}], v{a0} offset:{2048*ks}")
            rd_ids[i % NSL] = g.lds(f"ds_read_b64_tr_b16 v[{b+2}:{b+3}], v{a0+1} offset:{2048*ks+1024}")

    def mfma(i):
        sl = slots[i]
        b = FR + 4 * (i % 8)
        if sl[0] == "K":
            _, k, c, kh, kt, s = sl
            d = S0 + 16 * (4 * kh + kt)
            qb = qf_base(c)
            cc = "0" if (c == 0 and s == 0) else f"v[{d}:{d+15}]"
            e(f"v_mfma_f32_32x32x16_bf16 v[{d}:{d+15}], v[{b}:{b+3}], v[{qb+4*s}:{qb+4*s+3}], {cc}")
        else:
            _, k, c, kh, ks, tt = sl
            d = OA + 32 * (c & 1) + 16 * tt
            p = S0 + 4 * (8 * kh + ks)
            cc = "0" if (kh == 0 and ks == 0) else f"v[{d}:{d+15}]"
            e(f"v_mfma_f32_32x32x16_bf16 v[{d}:{d+15}], v[{b}:{b+3}], v[{p}:{p+3}], {cc}")

    def softmax():
        MX = OA + 48
        SUM = MX + 4
        TA, TB = MX + 8, MX + 9
        e("s_nop 7")
        vals = list(range(128))
        for k in range(4):
            a, b, cc = vals[:3]
            vals = vals[3:]
            e(f"v_max3_f32 v{MX+k}, v{a}, v{b}, v{cc}")
        k = 0
        while vals:
            a, b = vals[:2]
            vals = vals[2:]
            e(f"v_max3_f32 v{MX+k}, v{MX+k}, v{a}, v{b}")
            k = (k + 1) % 4
        e(f"v_max3_f32 v{MX}, v{MX}, v{MX+1}, v{MX+2}")
        e(f"v_max_f32 v{TA}, v{MX}, v{MX+3}")
        e(f"v_max_f32 v{TB}, v{MX}, v{MX+3}")
        e("s_nop 1")
        e(f"v_permlane32_swap_b32 v{TA}, v{TB}")
        e("s_nop 1")
        e(f"v_max_f32 v{TA}, v{TA}, v{TB}")
        e(f"v_mul_f32 v{VINV}, s{S_NEGC}, v{TA}")
        for i in range(4):
            e(f"v_mov_b32 v{SUM+i}, 0")

        def A(i):
            e(f"v_pk_fma_f32 v[{2*i}:{2*i+1}], v[{2*i}:{2*i+1}], s[{S_C}:{S_C+1}], v[{VINV}:{VINV+1}] op_sel_hi:[1,0,0]")

        def B(i):
            e(f"v_exp_f32 v{2*i}, v{2*i}")
            e(f"v_exp_f32 v{2*i+1}, v{2*i+1}")

        def C(i):
            s = SUM + 2 * (i & 1)
            e(f"v_pk_add_f32 v[{s}:{s+1}], v[{s}:{s+1}], v[{2*i}:{2*i+1}]")
            e(f"v_cvt_pk_bf16_f32 v{i}, v{2*i}, v{2*i+1}")
        A(0); A(1); B(0)
        for i in range(64):
            if i + 2 < 64:
                A(i + 2)
            if i + 1 < 64:
                B(i + 1)
            else:
                e("s_nop 0")
            C(i)
        e(f"v_pk_add_f32 v[{SUM}:{SUM+1}], v[{SUM}:{SUM+1}], v[{SUM+2}:{SUM+3}]")
        e(f"v_add_f32 v{TA}, v{SUM}, v{SUM+1}")
        e(f"v_add_f32 v{TB}, v{SUM}, v{SUM+1}")
        e("s_nop 1")
        e(f"v_permlane32_swap_b32 v{TA}, v{TB}")
        e("s_nop 1")
        e(f"v_add_f32 v{TA}, v{TA}, v{TB}")
        e(f"v_rcp_f32 v{VINV}, v{TA}")
        e("s_nop 1")

    def epi_parts(c):
        parts = []
        tmp = QF if c < 2 else OA + 48
        st = {}
        for tt in range(2):
            for gq in range(4):
                def f(tt=tt, gq=gq):
                    a = OA + 32 * (c & 1) + 16 * tt + 4 * gq
                    cidx = 4 * tt + gq
                    e(f"v_pk_mul_f32 v[{a}:{a+1}], v[{a}:{a+1}], v[{VINV}:{VINV+1}] op_sel_hi:[1,0]")
                    e(f"v_pk_mul_f32 v[{a+2}:{a+3}], v[{a+2}:{a+3}], v[{VINV}:{VINV+1}] op_sel_hi:[1,0]")
                    e(f"v_cvt_pk_bf16_f32 v{a}, v{a}, v{a+1}")
                    e(f"v_cvt_pk_bf16_f32 v{a+1}, v{a+2}, v{a+3}")
                    if cidx:
                        e(f"v_xor_b32 v{a+2}, {16*cidx}, v{VOW}")
                        g.lds(f"ds_write_b64 v{a+2}, v[{a}:{a+1}]")
                    else:
                        g.lds(f"ds_write_b64 v{VOW}, v[{a}:{a+1}]")
                parts.append(f)

        def reads():
            for j in range(4):
                st[j] = g.lds(f"ds_read_b128 v[{tmp+4*j}:{tmp+4*j+3}], v{VOR} offset:{1024*j}")
        parts.append(reads)
        for j in range(4):
            def f(j=j):
                if st[j] in g.ldsq:
                    g.wait_lds(st[j])
                off = f" offset:{128*c}" if c else ""
                e(f"buffer_store_dwordx4 v[{tmp+4*j}:{tmp+4*j+3}], v{VOOFF}, s[{SO}:{SO+3}], s{S_OS+j} offen{off}{stflag}")
                g.vm.append(("S",))
            parts.append(f)
        return parts

    g.vm.append(("LOOPSTART0",))
    barrier_seq(0, 0, 0)
    for n in ISSUE[0]:
        dma(n, n)
    for i in range(D):
        rd(i)
    ldsq_top = len(g.ldsq)

    lab("L_loop")
    g.vm.append(("LOOP",))
    srd(SV, 8, S_HEAD)

    fill = {i: [] for i in range(NSL)}

    def place_epi(c, step):
        parts = epi_parts(c)
        base = 16 * step
        pos = [2, 3, 4, 5, 6, 7, 8, 9, 10, 12, 13, 14, 15]
        for p, f in zip(pos, parts):
            fill[base + p].append(f)
    place_epi(2, 0)
    place_epi(0, 8)
    place_epi(1, 10)
    fill[16 * 1 + 2].append(lambda: srd(SO, 10, S_HEAD))

    def next_srds():
        e(f"s_add_u32 s{S_T2}, s{S_HEAD}, {NWG}")
        srd(SQ, 4, S_T2, valid=True)
        srd(SK, 6, S_T2, valid=True)
    fill[16 * 4 + 2].append(next_srds)

    pend_dma = []
    for i in range(NSL):
        k = i // 16
        if i % 16 == 0:
            c_(f"---- step {k}")
        j = i + D
        if j % 16 == 0:
            kk = (j // 16) % NSTEP
            wrap = j >= NSL
            barrier_seq(kk, NT if wrap else 0, NT if wrap else 0)
            pend_dma += [n + (NT if wrap else 0) for n in ISSUE[kk]]
        rd(j)
        if slots[i][0] == "K" and slots[i][4] == 0 and slots[i][5] == 0 and slots[i][3] == 0:
            pass
        if rd_ids[i] in g.ldsq:
            g.wait_lds(rd_ids[i])
        mfma(i)
        if pend_dma:
            n = pend_dma.pop(0)
            dma(n, n)
        for f in fill[i]:
            f()
        if i == 95:
            softmax()
            stamp()
    assert not pend_dma
    assert len(g.ldsq) == ldsq_top or o.stamps, (len(g.ldsq), ldsq_top)
    stamp()
    e(f"s_add_u32 s{S_HEAD}, s{S_HEAD}, {NWG}")
    e(f"s_add_u32 s{S_ROT}, s{S_ROT}, {NT % NS}")
    e(f"s_mov_b32 s{S_FIRST}, 0")
    e(f"s_cmp_lt_u32 s{S_HEAD}, {NHEADS}")
    e("s_cbranch_scc1 L_loop")
    g.vm.append(("LOOPEND",))
    c_("last head: remaining columns")
    e("s_nop 15")
    g.ldsq = []
    for f in epi_parts(2):
        f()
    e("s_waitcnt vmcnt(0)")
    if o.dbg:
        e("s_memrealtime s[60:61]")
        e("s_memtime s[62:63]")
        e("s_waitcnt lgkmcnt(0)")
        e("s_sub_u32 s62, s62, s66")
        e("s_and_b32 s61, s2, 63")
        e("s_cmp_eq_u32 s61, 0")
        e("s_cbranch_scc0 L_end")
        e(f"s_cmp_eq_u32 s{S_W}, 0")
        e("s_cbranch_scc0 L_end")
        e("s_lshr_b32 s61, s2, 6")
        e("s_lshl_b32 s61, s61, 4")
        e("v_mov_b32 v1, s61")
        e("v_mov_b32 v2, s64")
        e("v_mov_b32 v3, s60")
        e("v_mov_b32 v4, s62")
        e("v_mov_b32 v5, s2")
        e("s_mov_b64 exec, 1")
        e("global_store_dwordx4 v1, v[2:5], s[56:57]")
        e("s_waitcnt vmcnt(0)")
    if o.stamps:
        stamp()
        e("s_lshl_b32 s58, s2, 8")
        e("s_add_u32 s56, s56, s58")
        e("s_addc_u32 s57, s57, 0")
        e("v_mbcnt_lo_u32_b32 v1, -1, 0")
        e("v_mbcnt_hi_u32_b32 v1, -1, v1")
        e("v_lshlrev_b32 v1, 2, v1")
        e(f"s_cmp_eq_u32 s{S_W}, 0")
        e("s_cbranch_scc0 L_end")
        e(f"global_store_dword v1, v{VT2}, s[56:57]")
        e("s_waitcnt vmcnt(0)")
    lab("L_end")
    e("s_endpgm")

    i0 = g.vm.index(("LOOP",))
    i1 = g.vm.index(("LOOPEND",))
    pro = [x for x in g.vm[:i0] if x[0] in ("D", "S", "X", "W")]
    body = g.vm[i0 + 1:i1]
    res = {}
    ops = []
    for x in pro:
        if x[0] == "W":
            idx = max(i for i, y in enumerate(ops) if y == ("D", x[2]))
            res[(x[1], 0)] = len(ops) - 1 - idx
        else:
            ops.append(x)
    for it in range(3):
        for x in body:
            if x[0] == "W":
                need = x[2] + NT * it
                idx = max(i for i, y in enumerate(ops) if y == ("D", need))
                res[(x[1], it)] = len(ops) - 1 - idx
            elif x[0] == "D":
                ops.append(("D", x[1] + NT * it))
            else:
                ops.append(x)
    lines = []
    for ln in g.L:
        if ln.startswith("@@WAIT"):
            w = int(ln.split()[1])
            if w == 0:
                lines.append(f"    s_waitcnt vmcnt({res[(0, 0)]})")
                continue
            f0, s1, s2 = res[(w, 0)], res[(w, 1)], res[(w, 2)]
            assert s1 == s2, (w, s1, s2)
            lines.append(f"    s_waitcnt vmcnt({min(s1, 63)})")
            if f0 < s1:
                lines.append(f"    s_cmp_eq_u32 s{S_FIRST}, 0")
                lines.append(f"    s_cbranch_scc1 L_w{w}")
                lines.append(f"    s_waitcnt vmcnt({f0})")
                lines.append(f"L_w{w}:")
        else:
            lines.append(ln)

    out += lines
    out.append('.section .rodata,"a"')
    out.append(".p2align 6")
    out.append(f".amdhsa_kernel {NAME}_kernel")
    out.append("  .amdhsa_next_free_vgpr 256")
    out.append("  .amdhsa_next_free_sgpr 72")
    out.append("  .amdhsa_accum_offset 256")
    out.append("  .amdhsa_group_segment_fixed_size 0")
    out.append("  .amdhsa_kernarg_size 48")
    out.append("  .amdhsa_user_sgpr_count 2")
    out.append("  .amdhsa_user_sgpr_kernarg_segment_ptr 1")
    out.append("  .amdhsa_system_sgpr_workgroup_id_x 1")
    out.append(".end_amdhsa_kernel")
    return "\n".join(out) + "\n"


def main():
    ap = argparse.ArgumentParser()
    ap.add_argument("-o", default="cdna_kernels/" + NAME + ".s")
    ap.add_argument("--ldflag", default="nt")
    ap.add_argument("--stflag", default="sc0 sc1")
    ap.add_argument("--depth", type=int, default=6)
    ap.add_argument("--codepf", type=int, default=0)
    ap.add_argument("--stamps", action="store_true")
    ap.add_argument("--nostampb", action="store_true")
    ap.add_argument("--cyc", action="store_true")
    ap.add_argument("--dbg", action="store_true")
    o = ap.parse_args()
    open(o.o, "w").write(build(o))


if __name__ == "__main__":
    main()
```

```python
import argparse, struct, math, re

NAME = "standalone__mha_softmax__near_ridge"
ROWB = 384
HEADB = 256 * ROWB
TILE = 16384
NS = 8
NHEADS = 512
NWG = 256
STG = NS * TILE
LDS = STG + 8 * 4096

HEADER = """; Kernarg layout for this problem (48 bytes, ptrs only, base s[0:1]):
"""

S0 = 0
OA = 128
FR = 192
QF = 224
VDMA = 240
VOOFF = 242
VOW = 243
VOR = 244
VKS = 245
VVS = 246
VCUR = 248
VT2 = 253
VINV = 254
SQ, SK, SV, SO = 12, 16, 20, 24
S_HEAD = 28
S_ROT = 29
S_WDMA = 30
S_QOFF = 31
S_C = 32
S_T0 = 34
S_W = 35
S_OS = 36
S_T1 = 40
S_T2 = 41
S_NEGC = 42
S_T3 = 43
S_QH = 44
S_FIRST = 45
S_PC = 48

TILES = []
for c in range(3):
    TILES += [("Q", 0, c), ("Q", 1, c), ("K", 0, c), ("K", 1, c)]
for c in range(3):
    TILES += [("V", 0, c), ("V", 1, c)]
NT = len(TILES)
FIRSTT = [0, 3, 4, 7, 8, 11, 12, 13, 14, 15, 16, 17, 18]
NSTEP = 12
ISSUE = {0: [6], 1: [7, 8, 9], 2: [10], 3: [11, 12, 13], 4: [14], 5: [15, 16, 17], 6: [18], 7: [19], 8: [20],
         9: [21], 10: [22], 11: [23]}


def qf_base(c):
    return QF if (c & 1) == 0 else OA + 32


class Gen:
    def __init__(self, o):
        self.o = o
        self.L = []
        self.ldsq = []
        self.nid = 0
        self.vm = []

    def e(self, s):
        self.L.append("    " + s)

    def c(self, s):
        self.L.append("    ; " + s)

    def lab(self, s):
        self.L.append(s + ":")

    def lds(self, s):
        self.e(s)
        self.nid += 1
        self.ldsq.append(self.nid)
        return self.nid

    def wait_lds(self, ident):
        pos = self.ldsq.index(ident)
        n = len(self.ldsq) - 1 - pos
        self.e(f"s_waitcnt lgkmcnt({min(n, 15)})")
        self.ldsq = self.ldsq[pos + 1:] if n <= 15 else self.ldsq[-15:]


def build(o):
    g = Gen(o)
    e, c_, lab = g.e, g.c, g.lab
    ldflag = (" " + o.ldflag) if o.ldflag else ""
    stflag = (" " + o.stflag) if o.stflag else ""
    D = o.depth

    out = [HEADER + f"; @launch grid=({NWG},1,1) block=(512,1,1) lds={LDS}"]
    out.append('.amdgcn_target "amdgcn-amd-amdhsa--gfx950"')
    out.append(".text")
    out.append(f".globl {NAME}_kernel")
    out.append(".p2align 8")
    out.append(f".type {NAME}_kernel,@function")
    out.append(f"{NAME}_kernel:")

    def stamp():
        if not o.stamps:
            return
        e("s_memtime s[60:61]" if o.cyc else "s_memrealtime s[60:61]")
        e("s_waitcnt lgkmcnt(0)")
        g.ldsq = []
        e("s_lshl_b64 exec, 1, s62")
        e(f"v_mov_b32 v{VT2}, s60")
        e("s_mov_b64 exec, -1")
        e("s_add_u32 s62, s62, 1")

    cval = (192 ** -0.5) * math.log2(math.e)
    cbits = struct.unpack("<I", struct.pack("<f", cval))[0]
    nbits = struct.unpack("<I", struct.pack("<f", -cval))[0]

    def srd(dst, ptr, headreg, valid=False):
        if not valid:
            e(f"s_mul_i32 s{S_T0}, s{headreg}, {HEADB}")
            e(f"s_mov_b32 s{dst+2}, {HEADB}")
        else:
            e(f"s_cmp_lt_u32 s{headreg}, {NHEADS}")
            e(f"s_cselect_b32 s{S_T0}, s{headreg}, 0")
            e(f"s_cselect_b32 s{dst+2}, {HEADB}, 0")
            e(f"s_mul_i32 s{S_T0}, s{S_T0}, {HEADB}")
        e(f"s_add_u32 s{dst}, s{ptr}, s{S_T0}")
        e(f"s_addc_u32 s{dst+1}, s{ptr+1}, 0")
        e(f"s_and_b32 s{dst+1}, s{dst+1}, 0xffff")
        e(f"s_mov_b32 s{dst+3}, 0x20000")

    def slot_addr(dst, n):
        e(f"s_add_u32 s{dst}, s{S_ROT}, {n}")
        e(f"s_and_b32 s{dst}, s{dst}, 7")
        e(f"s_lshl_b32 s{dst}, s{dst}, 14")

    def dma(n, absn):
        t, hh, c = TILES[n % NT]
        srdreg = {"Q": SQ, "K": SK, "V": SV}[t]
        slot_addr(S_T1, n)
        e(f"s_add_u32 m0, s{S_T1}, s{S_WDMA}")
        e(f"s_mov_b32 s{S_T3}, {49152*hh + 128*c}")
        e(f"buffer_load_dwordx4 v{VDMA}, s[{srdreg}:{srdreg+3}], s{S_T3} offen{ldflag} lds")
        e(f"buffer_load_dwordx4 v{VDMA+1}, s[{srdreg}:{srdreg+3}], s{S_T3} offen offset:1024{ldflag} lds")
        g.vm += [("D", absn)] * 2

    e(f"s_cmp_ge_u32 s2, {NWG}")
    e("s_cbranch_scc1 L_end")
    e("s_load_dwordx8 s[4:11], s[0:1], 0")
    if o.stamps:
        e("s_mov_b32 s62, 0")
        e(f"v_mov_b32 v{VT2}, 0")
        stamp()
        e("s_load_dwordx2 s[56:57], s[0:1], 40")
    e("v_lshrrev_b32 v1, 6, v0")
    e("v_and_b32 v2, 63, v0")
    e(f"v_readfirstlane_b32 s{S_W}, v1")
    e(f"s_mov_b32 s{S_HEAD}, s2")
    e(f"s_mov_b32 s{S_ROT}, 0")
    e(f"s_mov_b32 s{S_FIRST}, 1")
    e(f"s_lshl_b32 s{S_WDMA}, s{S_W}, 11")
    e(f"s_movk_i32 s{S_T2}, {ROWB}")
    e("v_lshrrev_b32 v3, 3, v2")
    e(f"s_lshl_b32 s{S_T0}, s{S_W}, 4")
    e(f"v_add_u32 v4, s{S_T0}, v3")
    e(f"v_mul_lo_u32 v4, v4, s{S_T2}")
    e("v_bfe_u32 v5, v2, 4, 1")
    e("v_lshlrev_b32 v5, 2, v5")
    e("v_lshrrev_b32 v6, 5, v2")
    e("v_or_b32 v5, v5, v6")
    e("v_and_b32 v7, 7, v2")
    e("v_xor_b32 v8, v7, v5")
    e("v_lshlrev_b32 v8, 4, v8")
    e(f"v_add_u32 v{VDMA}, v4, v8")
    e("v_xor_b32 v8, 32, v8")
    e("v_add_u32 v8, v4, v8")
    e(f"v_add_u32 v{VDMA+1}, {8*ROWB-1024}, v8")
    e("s_waitcnt lgkmcnt(0)")
    srd(SQ, 4, S_HEAD)
    srd(SK, 6, S_HEAD)
    for n in range(0, ISSUE[0][0]):
        dma(n, n)
    if o.codepf:
        c_("warm the L2 with this kernel's own code")
        e(f"s_getpc_b64 s[{S_PC}:{S_PC+1}]")
        e(f"s_and_b32 s{S_PC}, s{S_PC}, 0xffffff00")
        e("v_lshlrev_b32 v9, 4, v0")
        for j in range(o.codepf):
            if j:
                e("v_add_u32 v9, 8192, v9")
            e(f"global_load_dwordx4 v[{64+4*j}:{64+4*j+3}], v9, s[{S_PC}:{S_PC+1}]")
            g.vm.append(("X",))
    e(f"s_mov_b32 s{S_C}, {cbits:#x}")
    e(f"s_mov_b32 s{S_C+1}, {cbits:#x}")
    e(f"s_mov_b32 s{S_NEGC}, {nbits:#x}")
    for j in range(4):
        e(f"s_mov_b32 s{S_OS+j}, {3072*j}")
    e(f"s_and_b32 s{S_QOFF}, s{S_W}, 3")
    e(f"s_lshl_b32 s{S_QOFF}, s{S_QOFF}, 12")
    e(f"s_lshr_b32 s{S_QH}, s{S_W}, 2")
    c_("null output descriptor: the first head has no predecessor whose last columns are still to be stored")
    e(f"s_mov_b32 s{SO}, s10")
    e(f"s_and_b32 s{SO+1}, s11, 0xffff")
    e(f"s_mov_b32 s{SO+2}, 0")
    e(f"s_mov_b32 s{SO+3}, 0x20000")
    e("v_and_b32 v3, 31, v2")
    e("v_and_b32 v4, 2, v3")
    e("v_lshlrev_b32 v4, 1, v4")
    e("v_bfe_u32 v5, v3, 2, 2")
    e("v_or_b32 v4, v4, v5")
    e("v_xor_b32 v4, v4, v6")
    e("v_lshlrev_b32 v4, 4, v4")
    e("v_lshlrev_b32 v5, 7, v3")
    e(f"v_add_u32 v{VKS}, v5, v4")
    e(f"s_lshl_b32 s{S_T0}, s{S_W}, 12")
    e(f"s_add_u32 s{S_T0}, s{S_T0}, {STG}")
    e("v_and_b32 v4, 7, v3")
    e("v_lshlrev_b32 v4, 4, v4")
    e("v_add_u32 v5, v5, v4")
    e("v_lshlrev_b32 v4, 3, v6")
    e("v_add_u32 v5, v5, v4")
    e(f"v_add_u32 v{VOW}, s{S_T0}, v5")
    e("v_lshrrev_b32 v5, 3, v2")
    e("v_xor_b32 v8, v5, v7")
    e("v_lshlrev_b32 v8, 4, v8")
    e("v_lshlrev_b32 v4, 7, v5")
    e("v_add_u32 v8, v8, v4")
    e(f"v_add_u32 v{VOR}, s{S_T0}, v8")
    e(f"s_lshl_b32 s{S_T0}, s{S_W}, 5")
    e(f"v_add_u32 v5, s{S_T0}, v5")
    e(f"v_mul_lo_u32 v5, v5, s{S_T2}")
    e("v_lshlrev_b32 v4, 4, v7")
    e(f"v_add_u32 v{VOOFF}, v5, v4")
    e("v_bfe_u32 v5, v2, 2, 2")
    e("v_lshlrev_b32 v4, 2, v6")
    e("v_add_u32 v4, v4, v5")
    e("v_lshlrev_b32 v4, 7, v4")
    e("v_lshrrev_b32 v8, 1, v5")
    e("v_lshlrev_b32 v8, 2, v8")
    e("v_or_b32 v8, v8, v6")
    e("v_bfe_u32 v9, v2, 4, 1")
    e("v_lshlrev_b32 v9, 1, v9")
    e("v_bfe_u32 v10, v2, 1, 1")
    e("v_or_b32 v9, v9, v10")
    e("v_xor_b32 v8, v8, v9")
    e("v_lshlrev_b32 v8, 4, v8")
    e("v_add_u32 v4, v4, v8")
    e("v_and_b32 v9, 1, v2")
    e("v_lshlrev_b32 v9, 3, v9")
    e(f"v_add_u32 v{VVS}, v4, v9")

    slots = []
    for k in range(6):
        c, kh = k // 2, k % 2
        for kt in range(4):
            for s in range(4):
                slots.append(("K", k, c, kh, kt, s))
    for k in range(6, 12):
        c, kh = (k - 6) // 2, (k - 6) % 2
        for ks in range(8):
            for tt in range(2):
                slots.append(("V", k, c, kh, ks, tt))
    NSL = len(slots)
    rd_ids = {}
    q_ids = {}

    def cur_bases(static, tile):
        slot_addr(S_T1, tile)
        e(f"v_add_u32 v{VCUR}, s{S_T1}, v{static}")
        e(f"v_xor_b32 v{VCUR+1}, 32, v{VCUR}")
        e(f"v_xor_b32 v{VCUR+2}, 64, v{VCUR}")
        e(f"v_xor_b32 v{VCUR+3}, 0x60, v{VCUR}")

    wait_marks = []

    def barrier_seq(k, base, absbase):
        need = absbase + FIRSTT[k + 1] - 1
        g.L.append(f"@@WAIT {len(wait_marks)}")
        wait_marks.append((k, need))
        g.vm.append(("W", len(wait_marks) - 1, need))
        e("s_barrier")
        if not o.nostampb:
            stamp()
        if k < 6:
            c, kh = k // 2, k % 2
            if kh == 0:
                e(f"s_add_u32 s{S_T1}, s{S_ROT}, s{S_QH}")
                e(f"s_add_u32 s{S_T1}, s{S_T1}, {base + FIRSTT[k]}")
                e(f"s_and_b32 s{S_T1}, s{S_T1}, 7")
                e(f"s_lshl_b32 s{S_T1}, s{S_T1}, 14")
                e(f"s_add_u32 s{S_T1}, s{S_T1}, s{S_QOFF}")
                e(f"v_add_u32 v{VCUR}, s{S_T1}, v{VKS}")
                e(f"v_xor_b32 v{VCUR+1}, 32, v{VCUR}")
                e(f"v_xor_b32 v{VCUR+2}, 64, v{VCUR}")
                e(f"v_xor_b32 v{VCUR+3}, 0x60, v{VCUR}")
                qb = qf_base(c)
                for s in range(4):
                    i_ = g.lds(f"ds_read_b128 v[{qb+4*s}:{qb+4*s+3}], v{VCUR+s}")
                q_ids[c] = i_
                cur_bases(VKS, base + FIRSTT[k] + 2)
            else:
                cur_bases(VKS, base + FIRSTT[k])
        else:
            cur_bases(VVS, base + FIRSTT[k])

    def rd(i):
        sl = slots[i % NSL]
        b = FR + 4 * (i % 8)
        if sl[0] == "K":
            _, k, c, kh, kt, s = sl
            rd_ids[i % NSL] = g.lds(f"ds_read_b128 v[{b}:{b+3}], v{VCUR+s} offset:{4096*kt}")
        else:
            _, k, c, kh, ks, tt = sl
            a0 = VCUR + 2 * tt
            g.lds(f"ds_read_b64_tr_b16 v[{b}:{b+1}], v{a0} offset:{2048*ks}")
            rd_ids[i % NSL] = g.lds(f"ds_read_b64_tr_b16 v[{b+2}:{b+3}], v{a0+1} offset:{2048*ks+1024}")

    def mfma(i):
        sl = slots[i]
        b = FR + 4 * (i % 8)
        if sl[0] == "K":
            _, k, c, kh, kt, s = sl
            d = S0 + 16 * (4 * kh + kt)
            qb = qf_base(c)
            cc = "0" if (c == 0 and s == 0) else f"v[{d}:{d+15}]"
            e(f"v_mfma_f32_32x32x16_bf16 v[{d}:{d+15}], v[{b}:{b+3}], v[{qb+4*s}:{qb+4*s+3}], {cc}")
        else:
            _, k, c, kh, ks, tt = sl
            d = OA + 32 * (c & 1) + 16 * tt
            p = S0 + 4 * (8 * kh + ks)
            cc = "0" if (kh == 0 and ks == 0) else f"v[{d}:{d+15}]"
            e(f"v_mfma_f32_32x32x16_bf16 v[{d}:{d+15}], v[{b}:{b+3}], v[{p}:{p+3}], {cc}")

    def softmax():
        MX = OA + 48
        SUM = MX + 4
        TA, TB = MX + 8, MX + 9
        e("s_nop 7")
        vals = list(range(128))
        for k in range(4):
            a, b, cc = vals[:3]
            vals = vals[3:]
            e(f"v_max3_f32 v{MX+k}, v{a}, v{b}, v{cc}")
        k = 0
        while vals:
            a, b = vals[:2]
            vals = vals[2:]
            e(f"v_max3_f32 v{MX+k}, v{MX+k}, v{a}, v{b}")
            k = (k + 1) % 4
        e(f"v_max3_f32 v{MX}, v{MX}, v{MX+1}, v{MX+2}")
        e(f"v_max_f32 v{TA}, v{MX}, v{MX+3}")
        e(f"v_max_f32 v{TB}, v{MX}, v{MX+3}")
        e("s_nop 1")
        e(f"v_permlane32_swap_b32 v{TA}, v{TB}")
        e("s_nop 1")
        e(f"v_max_f32 v{TA}, v{TA}, v{TB}")
        e(f"v_mul_f32 v{VINV}, s{S_NEGC}, v{TA}")
        for i in range(4):
            e(f"v_mov_b32 v{SUM+i}, 0")

        def A(i):
            e(f"v_pk_fma_f32 v[{2*i}:{2*i+1}], v[{2*i}:{2*i+1}], s[{S_C}:{S_C+1}], v[{VINV}:{VINV+1}] op_sel_hi:[1,0,0]")

        def B(i):
            e(f"v_exp_f32 v{2*i}, v{2*i}")
            e(f"v_exp_f32 v{2*i+1}, v{2*i+1}")

        def C(i):
            s = SUM + 2 * (i & 1)
            e(f"v_pk_add_f32 v[{s}:{s+1}], v[{s}:{s+1}], v[{2*i}:{2*i+1}]")
            e(f"v_cvt_pk_bf16_f32 v{i}, v{2*i}, v{2*i+1}")
        A(0); A(1); B(0)
        for i in range(64):
            if i + 2 < 64:
                A(i + 2)
            if i + 1 < 64:
                B(i + 1)
            else:
                e("s_nop 0")
            C(i)
        e(f"v_pk_add_f32 v[{SUM}:{SUM+1}], v[{SUM}:{SUM+1}], v[{SUM+2}:{SUM+3}]")
        e(f"v_add_f32 v{TA}, v{SUM}, v{SUM+1}")
        e(f"v_add_f32 v{TB}, v{SUM}, v{SUM+1}")
        e("s_nop 1")
        e(f"v_permlane32_swap_b32 v{TA}, v{TB}")
        e("s_nop 1")
        e(f"v_add_f32 v{TA}, v{TA}, v{TB}")
        e(f"v_rcp_f32 v{VINV}, v{TA}")
        e("s_nop 1")

    def epi_parts(c):
        parts = []
        tmp = QF if c < 2 else OA + 48
        st = {}
        for tt in range(2):
            for gq in range(4):
                def f(tt=tt, gq=gq):
                    a = OA + 32 * (c & 1) + 16 * tt + 4 * gq
                    cidx = 4 * tt + gq
                    e(f"v_pk_mul_f32 v[{a}:{a+1}], v[{a}:{a+1}], v[{VINV}:{VINV+1}] op_sel_hi:[1,0]")
                    e(f"v_pk_mul_f32 v[{a+2}:{a+3}], v[{a+2}:{a+3}], v[{VINV}:{VINV+1}] op_sel_hi:[1,0]")
                    e(f"v_cvt_pk_bf16_f32 v{a}, v{a}, v{a+1}")
                    e(f"v_cvt_pk_bf16_f32 v{a+1}, v{a+2}, v{a+3}")
                    if cidx:
                        e(f"v_xor_b32 v{a+2}, {16*cidx}, v{VOW}")
                        g.lds(f"ds_write_b64 v{a+2}, v[{a}:{a+1}]")
                    else:
                        g.lds(f"ds_write_b64 v{VOW}, v[{a}:{a+1}]")
                parts.append(f)

        def reads():
            for j in range(4):
                st[j] = g.lds(f"ds_read_b128 v[{tmp+4*j}:{tmp+4*j+3}], v{VOR} offset:{1024*j}")
        parts.append(reads)
        for j in range(4):
            def f(j=j):
                if st[j] in g.ldsq:
                    g.wait_lds(st[j])
                off = f" offset:{128*c}" if c else ""
                e(f"buffer_store_dwordx4 v[{tmp+4*j}:{tmp+4*j+3}], v{VOOFF}, s[{SO}:{SO+3}], s{S_OS+j} offen{off}{stflag}")
                g.vm.append(("S",))
            parts.append(f)
        return parts

    g.vm.append(("LOOPSTART0",))
    barrier_seq(0, 0, 0)
    for n in ISSUE[0]:
        dma(n, n)
    for i in range(D):
        rd(i)
    ldsq_top = len(g.ldsq)

    lab("L_loop")
    g.vm.append(("LOOP",))
    srd(SV, 8, S_HEAD)

    fill = {i: [] for i in range(NSL)}

    def place_epi(c, step):
        parts = epi_parts(c)
        base = 16 * step
        pos = [2, 3, 4, 5, 6, 7, 8, 9, 10, 12, 13, 14, 15]
        for p, f in zip(pos, parts):
            fill[base + p].append(f)
    place_epi(2, 0)
    place_epi(0, 8)
    place_epi(1, 10)
    fill[16 * 1 + 2].append(lambda: srd(SO, 10, S_HEAD))

    def next_srds():
        e(f"s_add_u32 s{S_T2}, s{S_HEAD}, {NWG}")
        srd(SQ, 4, S_T2, valid=True)
        srd(SK, 6, S_T2, valid=True)
    fill[16 * 4 + 2].append(next_srds)

    pend_dma = []
    for i in range(NSL):
        k = i // 16
        if i % 16 == 0:
            c_(f"---- step {k}")
        j = i + D
        if j % 16 == 0:
            kk = (j // 16) % NSTEP
            wrap = j >= NSL
            barrier_seq(kk, NT if wrap else 0, NT if wrap else 0)
            pend_dma += [n + (NT if wrap else 0) for n in ISSUE[kk]]
        rd(j)
        if slots[i][0] == "K" and slots[i][4] == 0 and slots[i][5] == 0 and slots[i][3] == 0:
            pass
        if rd_ids[i] in g.ldsq:
            g.wait_lds(rd_ids[i])
        mfma(i)
        if pend_dma:
            n = pend_dma.pop(0)
            dma(n, n)
        for f in fill[i]:
            f()
        if i == 95:
            softmax()
            stamp()
    assert not pend_dma
    assert len(g.ldsq) == ldsq_top or o.stamps, (len(g.ldsq), ldsq_top)
    stamp()
    e(f"s_add_u32 s{S_HEAD}, s{S_HEAD}, {NWG}")
    e(f"s_add_u32 s{S_ROT}, s{S_ROT}, {NT % NS}")
    e(f"s_mov_b32 s{S_FIRST}, 0")
    e(f"s_cmp_lt_u32 s{S_HEAD}, {NHEADS}")
    e("s_cbranch_scc1 L_loop")
    g.vm.append(("LOOPEND",))
    c_("last head: remaining columns")
    e("s_nop 15")
    g.ldsq = []
    for f in epi_parts(2):
        f()
    e("s_waitcnt vmcnt(0)")
    if o.stamps:
        stamp()
        e("s_lshl_b32 s58, s2, 8")
        e("s_add_u32 s56, s56, s58")
        e("s_addc_u32 s57, s57, 0")
        e("v_mbcnt_lo_u32_b32 v1, -1, 0")
        e("v_mbcnt_hi_u32_b32 v1, -1, v1")
        e("v_lshlrev_b32 v1, 2, v1")
        e(f"s_cmp_eq_u32 s{S_W}, 0")
        e("s_cbranch_scc0 L_end")
        e(f"global_store_dword v1, v{VT2}, s[56:57]")
        e("s_waitcnt vmcnt(0)")
    lab("L_end")
    e("s_endpgm")

    i0 = g.vm.index(("LOOP",))
    i1 = g.vm.index(("LOOPEND",))
    pro = [x for x in g.vm[:i0] if x[0] in ("D", "S", "X", "W")]
    body = g.vm[i0 + 1:i1]
    res = {}
    ops = []
    for x in pro:
        if x[0] == "W":
            idx = max(i for i, y in enumerate(ops) if y == ("D", x[2]))
            res[(x[1], 0)] = len(ops) - 1 - idx
        else:
            ops.append(x)
    for it in range(3):
        for x in body:
            if x[0] == "W":
                need = x[2] + NT * it
                idx = max(i for i, y in enumerate(ops) if y == ("D", need))
                res[(x[1], it)] = len(ops) - 1 - idx
            elif x[0] == "D":
                ops.append(("D", x[1] + NT * it))
            else:
                ops.append(x)
    lines = []
    for ln in g.L:
        if ln.startswith("@@WAIT"):
            w = int(ln.split()[1])
            if w == 0:
                lines.append(f"    s_waitcnt vmcnt({res[(0, 0)]})")
                continue
            f0, s1, s2 = res[(w, 0)], res[(w, 1)], res[(w, 2)]
            assert s1 == s2, (w, s1, s2)
            lines.append(f"    s_waitcnt vmcnt({min(s1, 63)})")
            if f0 < s1:
                lines.append(f"    s_cmp_eq_u32 s{S_FIRST}, 0")
                lines.append(f"    s_cbranch_scc1 L_w{w}")
                lines.append(f"    s_waitcnt vmcnt({f0})")
                lines.append(f"L_w{w}:")
        else:
            lines.append(ln)

    out += lines
    out.append('.section .rodata,"a"')
    out.append(".p2align 6")
    out.append(f".amdhsa_kernel {NAME}_kernel")
    out.append("  .amdhsa_next_free_vgpr 256")
    out.append("  .amdhsa_next_free_sgpr 72")
    out.append("  .amdhsa_accum_offset 256")
    out.append("  .amdhsa_group_segment_fixed_size 0")
    out.append("  .amdhsa_kernarg_size 48")
    out.append("  .amdhsa_user_sgpr_count 2")
    out.append("  .amdhsa_user_sgpr_kernarg_segment_ptr 1")
    out.append("  .amdhsa_system_sgpr_workgroup_id_x 1")
    out.append(".end_amdhsa_kernel")
    return "\n".join(out) + "\n"


def main():
    ap = argparse.ArgumentParser()
    ap.add_argument("-o", default="cdna_kernels/" + NAME + ".s")
    ap.add_argument("--ldflag", default="nt")
    ap.add_argument("--stflag", default="sc0 sc1")
    ap.add_argument("--depth", type=int, default=6)
    ap.add_argument("--codepf", type=int, default=0)
    ap.add_argument("--stamps", action="store_true")
    ap.add_argument("--nostampb", action="store_true")
    ap.add_argument("--cyc", action="store_true")
    o = ap.parse_args()
    open(o.o, "w").write(build(o))


if __name__ == "__main__":
    main()
```
